```python
import torch

def _softmax(x, axis=-1):
    return torch.softmax(x, dim=axis)

def _gelu(x):
    return torch.nn.functional.gelu(x, approximate='tanh')

def _silu(x):
    return torch.nn.functional.silu(x)

def _sigmoid(x):
    return torch.sigmoid(x)

def _layernorm(x, axis=-1, eps=1e-05):
    m = x.mean(dim=axis, keepdim=True)
    v = x.var(dim=axis, keepdim=True, unbiased=False)
    return (x - m) / torch.sqrt(v + eps)

def _scatter_add(tgt, idx, src, axis=0):
    return tgt.clone().index_add_(axis, idx, src)

def _segment_sum(src, seg, n):
    out = torch.zeros((n,) + src.shape[1:], dtype=src.dtype)
    return out.index_add_(0, seg, src)

def _pad(x, pw):
    flat = tuple((v for pair in reversed(pw) for v in pair))
    return torch.nn.functional.pad(x, flat)
kernel_name = 'parallel_sum__memory_aug_recurrent_mem_tr__glu_gated_geglu__prompt'

def setup_inputs():

    _w = lambda a: (lambda t: t.to(torch.bfloat16) if t.is_floating_point() else t)(torch.as_tensor(a))

    def _A_setup():
        B, S, Dm = (1, 2048, 1024)
        H, Dh = (32, 128)
        M, seg = (8, 32)
        seg = min(seg, S)
        S = S // seg * seg
        return {'x': _w((lambda *s: torch.randn(*s, dtype=torch.bfloat16) * 0.05)(B, S, Dm)), 'mem0': _w((lambda *s: torch.randn(*s, dtype=torch.bfloat16) * 0.2)(B, M, Dm)), 'Wq': _w((lambda *s: torch.randn(*s, dtype=torch.bfloat16) * 1.6)(Dm, H, Dh) * Dm ** (-0.5)), 'Wk': _w((lambda *s: torch.randn(*s, dtype=torch.bfloat16) * 1.6)(Dm, H, Dh) * Dm ** (-0.5)), 'Wv': _w((lambda *s: torch.randn(*s, dtype=torch.bfloat16) * 0.2)(Dm, H, Dh) * Dm ** (-0.5)), 'Wo': _w((lambda *s: torch.randn(*s, dtype=torch.bfloat16) * 0.2)(H, Dh, Dm) * (H * Dh) ** (-0.5)), 'seg_len': seg}
    _A_in = _A_setup()

    def _B_setup():
        B, S, Dm, Df = (1, 2048, 1024, 3584)
        return {'x': _w((lambda *s: torch.randn(*s, dtype=torch.bfloat16) * 0.05)(B, S, Dm)), 'w_gate': _w((lambda *s: torch.randn(*s, dtype=torch.bfloat16) * 0.4)(Dm, Df) * Dm ** (-0.5)), 'w_up': _w((lambda *s: torch.randn(*s, dtype=torch.bfloat16) * 0.4)(Dm, Df) * Dm ** (-0.5)), 'w_down': _w((lambda *s: torch.randn(*s, dtype=torch.bfloat16) * 0.4)(Df, Dm) * Df ** (-0.5))}
    _B_in = _B_setup()
    return {'A_x': _A_in['x'], 'A_mem0': _A_in['mem0'], 'A_Wq': _A_in['Wq'], 'A_Wk': _A_in['Wk'], 'A_Wv': _A_in['Wv'], 'A_Wo': _A_in['Wo'], 'A_seg_len': _A_in['seg_len'], 'B_x': _B_in['x'], 'B_w_gate': _B_in['w_gate'], 'B_w_up': _B_in['w_up'], 'B_w_down': _B_in['w_down']}

def reference(A_x, A_mem0, A_Wq, A_Wk, A_Wv, A_Wo, A_seg_len, B_x, B_w_gate, B_w_up, B_w_down):

    def _A_ref(x, mem0, Wq, Wk, Wv, Wo, seg_len):
        B, S, Dm = x.shape
        H, Dh = (Wq.shape[1], Wq.shape[2])
        M = mem0.shape[1]
        scale = Dh ** (-0.5)
        n_seg = S // seg_len
        L = M + seg_len
        idx = torch.arange(L)
        mask = (idx[:, None] < M) | (idx[:, None] >= idx[None, :])
        mem = mem0
        outs = []
        for s in range(n_seg):
            xs = x[:, s * seg_len:(s + 1) * seg_len, :].clone()
            h = torch.concatenate([mem, xs], axis=1)
            q = torch.einsum('btd,dhe->bhte', h, Wq)
            k = torch.einsum('btd,dhe->bhte', h, Wk)
            v = torch.einsum('btd,dhe->bhte', h, Wv)
            scores = torch.einsum('bhqe,bhke->bhqk', q, k) * scale
            scores = torch.where(mask[None, None], scores, -1000000000.0)
            p = _softmax(scores, axis=-1)
            o = torch.einsum('bhqk,bhke->bhqe', p, v)
            o = torch.einsum('bhte,hed->btd', o, Wo)
            mem = o[:, :M, :].clone()
            outs.append(o[:, M:, :])
        return torch.concatenate(outs, axis=1)

    def _B_ref(x, w_gate, w_up, w_down):
        g = torch.einsum('bsd,df->bsf', x, w_gate)
        u = torch.einsum('bsd,df->bsf', x, w_up)
        h = _gelu(g) * u
        return torch.einsum('bsf,fd->bsd', h, w_down)
    x = A_x
    xn = _layernorm(x, axis=-1)
    return x + _A_ref(xn, A_mem0, A_Wq, A_Wk, A_Wv, A_Wo, A_seg_len) + _B_ref(xn, B_w_gate, B_w_up, B_w_down)
```

```python
from common import *
from parts import *
import parts
import math

OPT = set()
LAST = 63
TIMEOUT = 2000000
L_QK = 0
L_V = 8192
L_RED = 12288
RSTR = 160
L_X = 17408
L_VM = 18432
L_KV = 20480
L_ST = 32768
C_MEM = WS_CH
C_XX = WS_CH + 0x040000
C_OO = WS_CH + 0x0C0000
C_PR = WS_CH + 0x200000
IDX, L8, QKW, KXR, VXR_, KMS, OOS, RADD, RRD, VW, VR, VMW = 2, 3, 4, 5, 6, 7, 8, 9, 10, 11, 12, 13
IDENT, MASKC, ONES, NEG1 = 16, 20, 24, 28
F, QA, VA, PS, XL, XR, KX, VXT, SA, P, OA, T = 32, 48, 64, 72, 104, 108, 120, 152, 156, 168, 176, 184
WQ, WK, WV, WO = 0, 64, 128, 192
sX, sIDX, sQD, sH = 60, 61, 62, 63
sS = 48
sMEMr, sXXw, sXX1, sXX2, sXX3, sOOw, sOOr, sPRw, sPR1, sPR2, sPR3, sMEMw = 49, 50, 51, 52, 53, 54, 55, 56, 57, 58, 59, 64
bMEM, bXX, bOO, bPR = 65, 66, 67, 68
sKsrc, sVsrc, sKM, sVM = 69, 70, 71, 72
sTO, sT0, sT1, sT2, sCl, sKVb = 73, 74, 75, 76, 77, 78
sCS = 79
sCS2 = 34
sOEX = 100
WSRD = f"s[{SRD_WS}:{SRD_WS+3}]"
D_ARR, D_MASK, D_ERR, D_LAT, D_PROG, D_FIN = 0, 4, 20, 24, 32, 36

def opt(name, default):
    for o in OPT:
        if o.startswith(name + "="): return int(o[len(name)+1:])
    return default
def delay(A, n):
    while n >= 16:
        k = min(n // 16, 15)
        A(f"s_sleep {k}"); n -= 16 * k
    if n > 0: A(f"s_nop {n-1}")
def st(A, i, cmpv=32):
    if parts.STAMPS:
        l = A.label("st")
        A(f"s_cmp_lg_u32 s{sS}, {cmpv}"); A(f"s_cbranch_scc1 {l}")
        A(f"s_{'memrealtime' if 'rt' in OPT else 'memtime'} s[{80+2*i}:{81+2*i}]")
        A(f"{l}:")
def smf(acc, a, b):
    return f"v_smfmac_f32_16x16x64_bf16 v[{acc}:{acc+3}], v[{a}:{a+3}], a[{b}:{b+7}], v{IDX}"
def mf(acc, a, b, c):
    return f"v_mfma_f32_16x16x32_bf16 v[{acc}:{acc+3}], v[{a}:{a+3}], v[{b}:{b+3}], {c}"
def retry(A, l, lexit):
    A(f"s_sub_u32 s{sTO}, s{sTO}, 1")
    A(f"s_cmp_lg_u32 s{sTO}, 0")
    A(f"s_cbranch_scc1 {l}")
    A(f"s_branch {lexit}")
def gather(A, tail, loads, bad, process, lexit, cnt):
    n = len(loads)
    for t in range(n):
        lc = A.label("gc"); ls = A.label("gs")
        A(f"s_waitcnt vmcnt({n-1-t})")
        A(f"{lc}:")
        bad(A, t)
        A(f"s_cbranch_vccnz {ls}")
        process(t)
        def stub(B, t=t, lc=lc, ls=ls):
            B(f"{ls}:")
            if "steplog" in OPT: B(f"s_add_u32 s{cnt}, s{cnt}, 1")
            B("s_waitcnt vmcnt(0)")
            B(loads[t])
            for u in range(t+1, n):
                sk = B.label("gk")
                bad(B, u)
                B(f"s_cbranch_vccz {sk}")
                B(loads[u])
                B(f"{sk}:")
            B("s_waitcnt vmcnt(0)")
            retry(B, lc, lexit)
        tail.append(stub)
def per_wave(A, fn):
    labs = [A.label("pw") for _ in range(4)]; done = A.label("pwd")
    for k in range(1, 4):
        A(f"s_cmp_eq_u32 s{S_W}, {k}")
        A(f"s_cbranch_scc1 {labs[k]}")
    for k in range(4):
        A(f"{labs[k]}:")
        fn(k)
        if k < 3: A(f"s_branch {done}")
    A(f"{done}:")
def addv(A, d, a, b, n):
    if "nopk" in OPT:
        for r in range(n): A(f"v_add_f32 v{d+r}, v{a+r}, v{b+r}")
    else:
        for r in range(0, n, 2): A(f"v_pk_add_f32 v[{d+r}:{d+r+1}], v[{a+r}:{a+r+1}], v[{b+r}:{b+r+1}]")

def offs(A):
    a = A
    a(f"s_and_b32 s{sT0}, s{sS}, 3")
    a(f"s_lshl_b32 s{sT1}, s{sT0}, 14")
    a(f"s_lshl_b32 s{sT2}, s{S_W}, 12")
    a(f"s_andn2_b32 s{sMEMr}, s{bMEM}, 0x3fff")
    a(f"s_add_u32 s{sMEMr}, s{sMEMr}, s{sT1}")
    a(f"s_add_u32 s{sMEMr}, s{sMEMr}, s{sT2}")
    a(f"s_add_u32 s{sOOw}, s{bOO}, s{sT1}")
    a(f"s_andn2_b32 s{sOOr}, s{sOOw}, 0x3fff")
    a(f"s_add_u32 s{sOOr}, s{sOOr}, s{sT2}")
    a(f"s_lshl_b32 s{sT1}, s{sT0}, 15")
    a(f"s_add_u32 s{sXXw}, s{bXX}, s{sT1}")
    a(f"s_xor_b32 s{sXX1}, s{sXXw}, 1024")
    a(f"s_xor_b32 s{sXX2}, s{sXXw}, 2048")
    a(f"s_xor_b32 s{sXX3}, s{sXXw}, 3072")
    a(f"s_add_u32 s{sCl}, s{sS}, 2")
    a(f"s_and_b32 s{sCl}, s{sCl}, 3")
    a(f"s_and_b32 s{sKVb}, s{sS}, 1")
    a(f"s_mul_i32 s{sKVb}, s{sKVb}, 10240")
def offsE(A):
    a = A
    a(f"s_and_b32 s{sT0}, s{sS}, 3")
    a(f"s_lshl_b32 s{sT1}, s{sT0}, 16")
    a(f"s_add_u32 s{sPRw}, s{bPR}, s{sT1}")
    a(f"s_xor_b32 s{sPR1}, s{sPRw}, {1 << 18}")
    a(f"s_xor_b32 s{sPR2}, s{sPRw}, {2 << 18}")
    a(f"s_xor_b32 s{sPR3}, s{sPRw}, {3 << 18}")
    a(f"s_add_u32 s{sT0}, s{sS}, 1")
    a(f"s_and_b32 s{sT0}, s{sT0}, 3")
    a(f"s_lshl_b32 s{sT1}, s{sT0}, 14")
    a(f"s_add_u32 s{sMEMw}, s{bMEM}, s{sT1}")

def setup_consts(A):
    w = S_W
    A(f"s_and_b32 s{sQD}, s{sIDX}, 3")
    A(f"s_lshr_b32 s{sH}, s{sIDX}, 2")
    A(f"s_lshl_b32 s{sT0}, s{sX}, 3")
    A(f"s_add_u32 s{sH}, s{sH}, s{sT0}")
    A(f"s_mov_b32 s{sTO}, {TIMEOUT}")
    A(f"s_mov_b32 s{sCS}, {f32bits(128 ** -0.5 * math.log2(math.e)):#x}")
    A(f"s_mov_b32 s{sCS2}, s{sCS}")
    A(f"s_mov_b32 s{sCS2+1}, s{sCS}")
    A(f"s_mov_b32 s{sOEX}, 0x00ff00ff")
    A(f"s_mov_b32 s{sOEX+1}, 0x00ff00ff")
    A(f"s_lshl_b32 s{bMEM}, s{sX}, 16")
    A(f"s_lshl_b32 s{sT0}, s{sIDX}, 9")
    A(f"s_add_u32 s{bMEM}, s{bMEM}, s{sT0}")
    A(f"s_add_u32 s{bOO}, s{bMEM}, {C_OO}")
    A(f"s_add_u32 s{bMEM}, s{bMEM}, {C_MEM}")
    A(f"s_lshl_b32 s{bXX}, s{sX}, 17")
    A(f"s_lshl_b32 s{sT0}, s{sIDX}, 10")
    A(f"s_add_u32 s{bXX}, s{bXX}, s{sT0}")
    A(f"s_add_u32 s{bXX}, s{bXX}, {C_XX}")
    A(f"s_lshl_b32 s{bPR}, s{sX}, 18")
    A(f"s_lshr_b32 s{sT0}, s{sIDX}, 3")
    A(f"s_lshl_b32 s{sT0}, s{sT0}, 14")
    A(f"s_add_u32 s{bPR}, s{bPR}, s{sT0}")
    A(f"s_and_b32 s{sT0}, s{sIDX}, 7")
    A(f"s_lshl_b32 s{sT0}, s{sT0}, 10")
    A(f"s_add_u32 s{bPR}, s{bPR}, s{sT0}")
    A(f"s_add_u32 s{bPR}, s{bPR}, {C_PR}")
    A(f"s_lshl_b32 s{sKsrc}, s{sH}, 13")
    A(f"s_lshl_b32 s{sT0}, s{sQD}, 11")
    A(f"s_add_u32 s{sVsrc}, s{sKsrc}, s{sT0}")
    A(f"s_add_u32 s{sKsrc}, s{sKsrc}, {WS_K}")
    A(f"s_add_u32 s{sVsrc}, s{sVsrc}, {WS_VT}")
    A(f"s_lshl_b32 s{sKM}, s{sH}, 11")
    A(f"s_lshl_b32 s{sT0}, s{sQD}, 9")
    A(f"s_add_u32 s{sKM}, s{sKM}, s{sT0}")
    A(f"s_add_u32 s{sVM}, s{sKM}, {WS_VM}")
    A(f"s_add_u32 s{sKM}, s{sKM}, {WS_KM}")
    g2 = T; g1 = T+1; gh = T+2; n = T+3
    A(f"v_bfe_u32 v{g2}, v0, 4, 2")
    A(f"v_bfe_u32 v{g1}, v0, 4, 1")
    A(f"v_bfe_u32 v{gh}, v0, 5, 1")
    A(f"v_and_b32 v{n}, 15, v0")
    A(f"v_lshrrev_b32 v{L8}, 1, v{V_L16}")
    A(f"v_mov_b32 v{IDX}, 0x4444")
    A(f"v_mov_b32 v{T+4}, 0xeeee")
    A(f"v_and_b32 v{T+5}, 8, v0")
    A(f"v_cmp_ne_u32 vcc, 0, v{T+5}")
    A(f"v_and_b32 v{T+5}, 7, v0")
    A(f"v_lshlrev_b32 v{T+5}, 4, v{T+5}")
    A(f"v_cndmask_b32 v{IDX}, v{IDX}, v{T+4}, vcc")
    A(f"v_lshl_add_u32 v{T+5}, v{g2}, 7, v{T+5}")
    A(f"v_mov_b32 v{KMS}, 0x7f000000")
    A(f"v_cndmask_b32 v{KMS}, v{KMS}, v{T+5}, vcc")
    A(f"s_lshl_b32 s{sT0}, s{w}, 11")
    A(f"v_add_u32 v{QKW}, s{sT0}, v{V_L16}")
    A(f"s_lshl_b32 s{sT0}, s{w}, 10")
    A(f"v_add_u32 v{VW}, s{sT0}, v{V_L16}")
    A(f"s_and_b32 s{sT1}, s{w}, 1")
    A(f"v_and_b32 v{VR}, 31, v0")
    A(f"v_lshlrev_b32 v{VMW}, 3, v{VR}")
    A(f"v_lshlrev_b32 v{VR}, 4, v{VR}")
    A(f"s_lshl_b32 s{sT0}, s{sT1}, 9")
    A(f"v_add_u32 v{VR}, s{sT0}, v{VR}")
    A(f"v_lshlrev_b32 v{VMW}, 3, v{n}")
    A(f"v_lshl_add_u32 v{VMW}, v{g1}, 8, v{VMW}")
    A(f"s_lshl_b32 s{sT0}, s{sT1}, 7")
    A(f"v_add_u32 v{VMW}, s{sT0}, v{VMW}")
    A(f"v_and_b32 v{KXR}, 3, v0")
    A(f"v_bfe_u32 v{T+4}, v0, 2, 1")
    A(f"v_lshl_add_u32 v{KXR}, v{T+4}, 2, v{KXR}")
    A(f"v_bfe_u32 v{T+4}, v0, 3, 1")
    A(f"v_lshl_add_u32 v{KXR}, v{T+4}, 4, v{KXR}")
    A(f"v_lshlrev_b32 v{KXR}, 4, v{KXR}")
    A(f"v_lshl_add_u32 v{KXR}, v{g2}, 9, v{KXR}")
    A(f"v_lshlrev_b32 v{VXR_}, 4, v{n}")
    A(f"v_lshl_add_u32 v{VXR_}, v{g2}, 9, v{VXR_}")
    A(f"s_lshl_b32 s{sT0}, s{sT1}, 8")
    A(f"v_add_u32 v{VXR_}, s{sT0}, v{VXR_}")
    A(f"v_and_b32 v{OOS}, 7, v0")
    A(f"v_lshlrev_b32 v{OOS}, 4, v{OOS}")
    A(f"v_lshl_add_u32 v{OOS}, v{gh}, 7, v{OOS}")
    A(f"v_lshl_add_u32 v{OOS}, v{g1}, 3, v{OOS}")
    A(f"v_add_u32 v{OOS}, s{sT0}, v{OOS}")
    A(f"v_mul_u32_u24 v{RADD}, {4*RSTR}, v{g1}")
    A(f"v_lshl_add_u32 v{RADD}, v{n}, 2, v{RADD}")
    A(f"v_lshl_add_u32 v{RADD}, v{gh}, 6, v{RADD}")
    A(f"s_mul_i32 s{sT0}, s{w}, {8*RSTR}")
    A(f"v_add_u32 v{RADD}, s{sT0}, v{RADD}")
    A(f"v_bfe_u32 v{T+4}, v0, 1, 3")
    A(f"v_mul_u32_u24 v{RRD}, {RSTR}, v{T+4}")
    A(f"v_lshl_add_u32 v{RRD}, v{g2}, 5, v{RRD}")
    A(f"v_and_b32 v{T+4}, 1, v0")
    A(f"v_lshl_add_u32 v{RRD}, v{T+4}, 4, v{RRD}")
    A(f"v_lshlrev_b32 v{T+4}, 2, v{g2}")
    A(f"v_sub_u32 v{T+4}, v{n}, v{T+4}")
    A(f"v_mov_b32 v{T+5}, 0x3f80")
    A(f"v_mov_b32 v{T+6}, 0x3f800000")
    for r in range(2):
        A(f"v_cmp_eq_u32 vcc, {2*r}, v{T+4}")
        A("s_nop 1")
        A(f"v_cndmask_b32 v{IDENT+r}, 0, v{T+5}, vcc")
        A(f"v_cmp_eq_u32 vcc, {2*r+1}, v{T+4}")
        A("s_nop 1")
        A(f"v_cndmask_b32 v{IDENT+r}, v{IDENT+r}, v{T+6}, vcc")
    A(f"v_cmp_eq_u32 vcc, 0, v{gh}")
    A(f"v_mov_b32 v{T+5}, {f32bits(-1e30):#x}")
    A("s_nop 0")
    for r in range(4):
        A(f"v_cndmask_b32 v{MASKC+r}, 0, v{T+5}, vcc")
        A(f"v_mov_b32 v{ONES+r}, 0x3f803f80")
        A(f"v_mov_b32 v{NEG1+r}, -1")

def kv_dma(A, which, base):
    if which == 2:
        for u in range(4):
            A(f"s_xor_b32 s{sT0}, s{sQD}, {u}")
            A(f"s_lshl_b32 s{sT0}, s{sT0}, 11")
            A(f"s_add_u32 s{sT0}, s{sT0}, s{sKsrc}")
            A(f"s_add_u32 m0, s{base}, {L_KV + u*2048}")
            A("s_nop 0")
            for c in range(2):
                A(f"buffer_load_dwordx4 v{V_L16}, {WSRD}, s{sT0} offen offset:{c*1024} sc1 lds")
        A(f"s_add_u32 s{sKsrc}, s{sKsrc}, {256*1024}")
    else:
        A(f"s_add_u32 m0, s{base}, {L_KV + 8192}")
        A("s_nop 0")
        for c in range(2):
            A(f"buffer_load_dwordx4 v{V_L16}, {WSRD}, s{sVsrc} offen offset:{c*1024} sc1 lds")
        A(f"s_add_u32 s{sVsrc}, s{sVsrc}, {256*1024}")

def clears(A, lf):
    A(f"s_lshl_b32 s{sT1}, s{sCl}, 15")
    A(f"s_add_u32 s{sT1}, s{sT1}, s{bXX}")
    A(f"buffer_store_dwordx4 v[{NEG1}:{NEG1+3}], v{V_L16}, {WSRD}, s{sT1} offen {lf}")
    A(f"s_lshl_b32 s{sT2}, s{sCl}, 14")
    A(f"s_add_u32 s{sT1}, s{sT2}, s{bOO}")
    A(f"buffer_store_dwordx2 v[{NEG1}:{NEG1+1}], v{L8}, {WSRD}, s{sT1} offen {lf}")
    A(f"s_add_u32 s{sT1}, s{sT2}, s{bMEM}")
    A(f"buffer_store_dwordx2 v[{NEG1}:{NEG1+1}], v{L8}, {WSRD}, s{sT1} offen {lf}")

def kmvm_store(A):
    A(f"ds_read_b128 v[{T}:{T+3}], v{V_L16} offset:{L_X}")
    A(f"ds_read_b64 v[{T+4}:{T+5}], v{L8} offset:{L_VM}")
    A("s_waitcnt lgkmcnt(0)")
    A(f"buffer_store_dwordx4 v[{T}:{T+3}], v{KMS}, {WSRD}, s{sKM} offen sc1")
    A(f"buffer_store_dwordx2 v[{T+4}:{T+5}], v{L8}, {WSRD}, s{sVM} offen sc1")
    A(f"s_add_u32 s{sKM}, s{sKM}, 65536")
    A(f"s_add_u32 s{sVM}, s{sVM}, 65536")

def load_weights(A):
    w = S_W
    VO = 200
    TB = 208
    TM = 212
    sSO, sM0 = 49, 50
    A(f"v_bfe_u32 v{T}, v0, 2, 4")
    A(f"v_bfe_u32 v{T+1}, v0, 4, 2")
    A(f"v_and_b32 v{T+2}, 3, v0")
    A(f"v_xor_b32 v{T+2}, v{T+2}, v{T+1}")
    A(f"v_lshlrev_b32 v{T+2}, 4, v{T+2}")
    A(f"s_lshl_b32 s{sT0}, s{w}, 8")
    A(f"v_add_u32 v{T}, s{sT0}, v{T}")
    A(f"v_lshl_add_u32 v{VO}, v{T}, 13, v{T+2}")
    A(f"v_lshl_add_u32 v{VO+4}, v{T}, 11, v{T+2}")
    for i in range(1, 4):
        A(f"v_add_u32 v{VO+i}, {16*8192-1024}, v{VO+i-1}")
        A(f"v_add_u32 v{VO+4+i}, {16*2048-1024}, v{VO+4+i-1}")
    A(f"v_bfe_u32 v{T}, v0, 2, 2")
    A(f"v_bfe_u32 v{T+1}, v0, 4, 1")
    A(f"v_bfe_u32 v{T+2}, v0, 5, 1")
    A(f"v_lshl_add_u32 v{T+3}, v{T+1}, 2, v{T}")
    A(f"v_lshl_add_u32 v{T+3}, v{T+2}, 4, v{T+3}")
    A(f"v_lshlrev_b32 v{T+3}, 6, v{T+3}")
    A(f"v_and_b32 v{T+5}, 1, v0")
    A(f"v_lshl_add_u32 v{T+3}, v{T+5}, 3, v{T+3}")
    A(f"s_lshl_b32 s{sM0}, s{w}, 15")
    A(f"s_add_u32 s{sM0}, s{sM0}, {L_ST}")
    A(f"v_add_u32 v{T+3}, s{sM0}, v{T+3}")
    A(f"v_bfe_u32 v{T+5}, v0, 1, 1")
    for j in range(2):
        A(f"v_lshl_add_u32 v{T+6}, v{T+5}, 1, {j}")
        A(f"v_xor_b32 v{T+6}, v{T+6}, v{T+1}")
        A(f"v_lshl_add_u32 v{TB+j}, v{T+6}, 4, v{T+3}")
        A(f"v_add_u32 v{T+6}, {2*j}, v{T+5}")
        A(f"v_xor_b32 v{T+6}, v{T+6}, v{T+1}")
        A(f"v_lshl_add_u32 v{TB+2+j}, v{T+6}, 4, v{T+3}")
    for k in range(4):
        A(f"v_xor_b32 v{TB+4+32+k}, 32, v{TB+k}")
    TB1 = TM + 32
    ptrs = [P_WQ, P_WK, P_WV, P_WO]
    def issue(m):
        A(f"s_mov_b32 s{SRD_W}, s{ptrs[m]}")
        A(f"s_and_b32 s{SRD_W+1}, s{ptrs[m]+1}, 0xffff")
        A(f"s_mov_b32 s{SRD_W+2}, {8*MB}")
        A(f"s_mov_b32 s{SRD_W+3}, 0x20000")
        if m < 3:
            A(f"s_lshl_b32 s{sSO}, s{sH}, 8")
            A(f"s_lshl_b32 s{sT0}, s{sQD}, 6")
        else:
            A(f"s_lshl_b32 s{sSO}, s{sX}, 21")
            A(f"s_lshl_b32 s{sT0}, s{sIDX}, 6")
        A(f"s_add_u32 s{sSO}, s{sSO}, s{sT0}")
        rs = 8192 if m < 3 else 2048
        vo = VO if m < 3 else VO + 4
        for q in range(4):
            A(f"s_add_u32 m0, s{sM0}, {(m & 1)*16384 + q*4096}")
            A("s_nop 0")
            for i in range(4):
                A(f"buffer_load_dwordx4 v{vo+i}, s[{SRD_W}:{SRD_W+3}], s{sSO} offen offset:{i*1024} lds")
            A(f"s_add_u32 s{sSO}, s{sSO}, {64*rs}")
    issue(0); issue(1)
    yield "issued"
    for m in range(4):
        A(f"s_waitcnt vmcnt({16 if m < 3 else 0})")
        for hh in range(2):
            for t2 in range(2):
                tt = 2*hh + t2
                for j in range(2):
                    for gh in range(2):
                        for hf_ in range(2):
                            d = TM + (t2*2+j)*8 + gh*4 + hf_*2
                            tb = (TB1 if hf_ else TB) + (0 if m < 2 else 2) + j
                            A(f"ds_read_b64_tr_b16 v[{d}:{d+1}], v{tb} offset:{(m & 1)*16384 + (64*tt+32*gh+8*hf_)*64}")
            A("s_waitcnt lgkmcnt(0)")
            if hh == 1 and m < 2: issue(m+2)
            for q in range(8):
                for k, src in enumerate([0, 2, 1, 3]):
                    A(f"v_accvgpr_write_b32 a{64*m + hh*32 + q*4 + k}, v{TM + q*4 + src}")
    yield "done"

def prep(A):
    for r in range(24):
        A(f"v_mov_b32 v{QA+r}, 0")

def step_body(A, lf, lexit, lloop, lfin, hooks):
    w = S_W
    tail = []
    A(f"{lloop}:")
    if "steplog" in OPT:
        l = A.label("sl")
        A(f"s_cmp_lg_u32 s{w}, 3"); A(f"s_cbranch_scc1 {l}")
        A("s_memtime s[80:81]"); A("s_waitcnt lgkmcnt(0)")
        A(f"s_mov_b32 m0, s{sS}"); A("s_nop 0")
        A("v_writelane_b32 v0, s80, m0")
        A(f"{l}:")
    st(A, 0)
    delay(A, opt("ad", 32))
    al = [f"buffer_load_dwordx4 v[{F+4*t}:{F+4*t+3}], v{V_L16}, {WSRD}, s{sMEMr} offen offset:{t*1024} sc1" for t in range(4)]
    for x in al: A(x)
    lk = A.label("nokx")
    A(f"s_cmp_ge_u32 s{w}, 2")
    A(f"s_cbranch_scc1 {lk}")
    A(f"v_add_u32 v{T}, s{sKVb}, v{KXR}")
    A(f"v_add_u32 v{T+1}, s{sKVb}, v{VXR_}")
    for u in range(4):
        for tile in range(2):
            d = KX + (u*2+tile)*4
            A(f"ds_read_b128 v[{d}:{d+3}], v{T} offset:{L_KV + u*2048 + tile*128}")
    A(f"ds_read_b128 v[{VXT}:{VXT+3}], v{T+1} offset:{L_KV + 8192}")
    A(f"{lk}:")
    def bad4(B, t):
        B(f"v_max_u32 v{T+15}, v{F+4*t}, v{F+4*t+2}")
        B(f"v_cmp_eq_u32 vcc, -1, v{T+15}")
    def proca(t):
        for j in range(2):
            A(smf(QA+8*j, F+4*t, WQ + (2*t+j)*8))
            A(smf(QA+8*j+4, F+4*t, WK + (2*t+j)*8))
    gather(A, tail, al, bad4, proca, lexit, 82)
    st(A, 1)
    A("s_nop 5")
    for j in range(2):
        for r in range(4):
            A(f"v_permlane32_swap_b32 v{QA+8*j+r}, v{QA+8*j+4+r}")
        addv(A, QA+8*j, QA+8*j, QA+8*j+4, 4)
        A(f"ds_write_b128 v{QKW}, v[{QA+8*j}:{QA+8*j+3}] offset:{L_QK + j*1024}")
    vl = [smf(VA+4*j, F+4*t, WV + (2*t+j)*8) for t in range(4) for j in range(2)]
    A(vl[0]); A(vl[1])
    A(f"s_cmp_ge_u32 s{w}, 2")
    A("s_waitcnt lgkmcnt(0)")
    A("s_barrier")
    l23 = A.label("b23"); lD = A.label("D")
    A(f"s_cbranch_scc1 {l23}")
    st(A, 2)
    for j in range(2):
        for k in range(4):
            d = PS + (j*4+k)*4
            A(f"ds_read_b128 v[{d}:{d+3}], v{V_L16} offset:{L_QK + k*2048 + j*1024}")
    A(vl[2]); A(vl[3]); A(vl[4]); A(vl[5])
    for j in range(2):
        b = PS + j*16
        A(f"s_waitcnt lgkmcnt({6 - 4*j})")
        addv(A, b, b, b+4, 4)
        A(f"s_waitcnt lgkmcnt({4 - 4*j})")
        addv(A, b+8, b+8, b+12, 4)
        addv(A, b, b, b+8, 4)
        A(f"v_cvt_pk_bf16_f32 v{T+2*j}, v{b}, v{b+1}")
        A(f"v_cvt_pk_bf16_f32 v{T+2*j+1}, v{b+2}, v{b+3}")
        if j == 1: A("s_nop 0")
        if j == 1: A(f"v_mfma_f32_16x16x16_bf16 v[{SA}:{SA+3}], v[{T}:{T+1}], v[{IDENT}:{IDENT+1}], 0")
    A(f"v_mfma_f32_16x16x16_bf16 v[{SA+4}:{SA+7}], v[{T+2}:{T+3}], v[{IDENT}:{IDENT+1}], 0")
    A(vl[6]); A(vl[7])
    A("s_nop 4")
    A(f"v_cvt_pk_bf16_f32 v{XL}, v{SA}, v{SA+1}")
    A(f"v_cvt_pk_bf16_f32 v{XL+1}, v{SA+2}, v{SA+3}")
    A(f"v_cvt_pk_bf16_f32 v{XL+2}, v{SA+4}, v{SA+5}")
    A(f"v_cvt_pk_bf16_f32 v{XL+3}, v{SA+6}, v{SA+7}")
    lns = A.label("nost")
    A(f"s_cmp_eq_u32 s{w}, 1")
    A(f"s_cbranch_scc1 {lns}")
    A(f"buffer_store_dwordx4 v[{XL}:{XL+3}], v{V_L16}, {WSRD}, s{sXXw} offen {lf}")
    A(f"ds_write_b128 v{V_L16}, v[{XL}:{XL+3}] offset:{L_X}")
    A(f"{lns}:")
    st(A, 3)
    def vhalf():
        for r in range(4):
            A(f"v_permlane32_swap_b32 v{VA+r}, v{VA+4+r}")
        addv(A, VA, VA, VA+4, 4)
        A(f"ds_write_b128 v{VW}, v[{VA}:{VA+3}] offset:{L_V}")
    A(mf(SA, KX, XL, "0"))
    A(mf(SA+4, KX+4, XL, "0"))
    A(mf(SA+8, XL, XL, f"v[{MASKC}:{MASKC+3}]"))
    vhalf()
    xl = [f"buffer_load_dwordx4 v[{XR+4*u}:{XR+4*u+3}], v{V_L16}, {WSRD}, s{so} offen sc1" for u, so in enumerate((sXX1, sXX2, sXX3))]
    delay(A, opt("bd", 32))
    for x in xl: A(x)
    A("s_waitcnt lgkmcnt(0)")
    A("s_barrier")
    for k in range(4):
        A(f"ds_read_b128 v[{PS+4*k}:{PS+4*k+3}], v{VR} offset:{L_V + k*1024}")
    offsE(A)
    A("s_waitcnt lgkmcnt(0)")
    addv(A, PS, PS, PS+4, 4); addv(A, PS+8, PS+8, PS+12, 4); addv(A, PS, PS, PS+8, 4)
    A(f"v_cvt_pk_bf16_f32 v{T+4}, v{PS}, v{PS+1}")
    A(f"v_cvt_pk_bf16_f32 v{T+5}, v{PS+2}, v{PS+3}")
    A(f"ds_write_b64 v{VMW}, v[{T+4}:{T+5}] offset:{L_VM}")
    def badx(B, u):
        B(f"v_cmp_eq_u32 vcc, -1, v{XR+4*u}")
    def procx(u):
        if u == 0: st(A, 4)
        A(mf(SA+8, XR+4*u, XR+4*u, f"v[{SA+8}:{SA+11}]"))
        A(mf(SA, KX+8+8*u, XR+4*u, f"v[{SA}:{SA+3}]"))
        A(mf(SA+4, KX+12+8*u, XR+4*u, f"v[{SA+4}:{SA+7}]"))
    gather(A, tail, xl, badx, procx, lexit, 83)
    A("s_nop 5")
    A(f"v_max3_f32 v{T}, v{SA+8}, v{SA+9}, v{SA+10}")
    A(f"v_max3_f32 v{T+1}, v{SA+11}, v{SA}, v{SA+1}")
    A(f"v_max3_f32 v{T}, v{T}, v{SA+2}, v{SA+3}")
    A(f"v_max3_f32 v{T+1}, v{T+1}, v{SA+4}, v{SA+5}")
    A(f"v_max3_f32 v{T}, v{T}, v{SA+6}, v{SA+7}")
    A(f"v_max_f32 v{T}, v{T}, v{T+1}")
    A(f"v_mov_b32 v{T+1}, v{T}")
    A("s_nop 1")
    A(f"v_permlane32_swap_b32 v{T}, v{T+1}")
    A(f"v_max_f32 v{T}, v{T}, v{T+1}")
    A(f"v_mov_b32 v{T+1}, v{T}")
    A("s_nop 1")
    A(f"v_permlane16_swap_b32 v{T}, v{T+1}")
    A(f"v_max_f32 v{T}, v{T}, v{T+1}")
    A(f"v_mul_f32 v{T}, s{sCS}, v{T}")
    for r in (8, 10, 0, 2, 4, 6):
        A(f"v_pk_fma_f32 v[{SA+r}:{SA+r+1}], v[{SA+r}:{SA+r+1}], s[{sCS2}:{sCS2+1}], v[{T}:{T+1}] op_sel_hi:[1,1,0] neg_lo:[0,0,1] neg_hi:[0,0,1]")
    for r in (8, 9, 10, 11, 0):
        A(f"v_exp_f32 v{SA+r}, v{SA+r}")
    A(f"v_cvt_pk_bf16_f32 v{P+4}, v{SA+8}, v{SA+9}")
    A(f"v_cvt_pk_bf16_f32 v{P+5}, v{SA+10}, v{SA+11}")
    A(f"v_exp_f32 v{SA+1}, v{SA+1}")
    A(f"v_exp_f32 v{SA+2}, v{SA+2}")
    A(f"v_mfma_f32_16x16x16_bf16 v[{OA+4}:{OA+7}], v[{ONES}:{ONES+1}], v[{P+4}:{P+5}], 0")
    A(f"v_exp_f32 v{SA+3}, v{SA+3}")
    A(f"v_mfma_f32_16x16x16_bf16 v[{OA}:{OA+3}], v[{T+4}:{T+5}], v[{P+4}:{P+5}], 0")
    for r in (4, 5, 6, 7):
        A(f"v_exp_f32 v{SA+r}, v{SA+r}")
    for r in range(4):
        A(f"v_cvt_pk_bf16_f32 v{P+r}, v{SA+2*r}, v{SA+2*r+1}")
    A("s_nop 1")
    A(mf(OA+4, ONES, P, f"v[{OA+4}:{OA+7}]"))
    A(mf(OA, VXT, P, f"v[{OA}:{OA+3}]"))
    A("s_nop 6")
    A(f"v_rcp_f32 v{T}, v{OA+4}")
    A(f"s_mov_b64 exec, s[{sOEX}:{sOEX+1}]")
    A(f"v_pk_mul_f32 v[{OA}:{OA+1}], v[{OA}:{OA+1}], v[{T}:{T+1}] op_sel_hi:[1,0]")
    A(f"v_pk_mul_f32 v[{OA+2}:{OA+3}], v[{OA+2}:{OA+3}], v[{T}:{T+1}] op_sel_hi:[1,0]")
    A(f"v_cvt_pk_bf16_f32 v{T+2}, v{OA}, v{OA+1}")
    A(f"v_cvt_pk_bf16_f32 v{T+3}, v{OA+2}, v{OA+3}")
    A(f"buffer_store_dwordx2 v[{T+2}:{T+3}], v{OOS}, {WSRD}, s{sOOw} offen {lf}")
    A("s_mov_b64 exec, -1")
    st(A, 5)
    A(f"s_branch {lD}")
    A(f"{l23}:")
    for x in vl[2:]: A(x)
    A("s_nop 7")
    vhalf()
    A("s_waitcnt lgkmcnt(0)")
    A("s_barrier")
    l3 = A.label("w3")
    A(f"s_cmp_eq_u32 s{w}, 2")
    A(f"s_cbranch_scc1 {lD}")
    clears(A, lf)
    if hooks.get("progress2"): hooks["progress2"](A)
    A(f"{lD}:")
    A(f"s_cmp_eq_u32 s{sS}, {LAST}")
    A("s_waitcnt lgkmcnt(0)")
    A("s_barrier")
    A(f"s_cbranch_scc1 {lfin}")
    delay(A, opt("dd", 40))
    ol = [f"buffer_load_dwordx4 v[{F+4*t}:{F+4*t+3}], v{V_L16}, {WSRD}, s{sOOr} offen offset:{t*1024} sc1" for t in range(4)]
    for x in ol: A(x)
    for r in range(8):
        A(f"v_mov_b32 v{OA+r}, 0")
    def procd(t):
        if t == 0: st(A, 6)
        for c in range(2):
            A(smf(OA+4*c, F+4*t, WO + (2*t+c)*8))
    gather(A, tail, ol, bad4, procd, lexit, 84)
    A("s_nop 7")
    for r in range(4):
        A(f"v_permlane32_swap_b32 v{OA+r}, v{OA+4+r}")
    addv(A, OA, OA, OA+4, 4)
    for r in range(4):
        A(f"ds_write_b32 v{RADD}, v{OA+r} offset:{L_RED + r*RSTR}")
    A(f"s_cmp_lg_u32 s{w}, 0")
    A("s_waitcnt lgkmcnt(0)")
    A("s_barrier")
    st(A, 7)
    if parts.STAMPS: A(f"s_cmp_lg_u32 s{w}, 0")
    lwait = A.label("wt")
    A(f"s_cbranch_scc1 {lwait}")
    for k in range(4):
        A(f"ds_read_b128 v[{PS+4*k}:{PS+4*k+3}], v{RRD} offset:{L_RED + k*8*RSTR}")
    A(f"s_bfe_u32 s{sT0}, s{sS}, 0x10002")
    A(f"v_mov_b32 v{T+6}, s{sT0}")
    A("s_waitcnt lgkmcnt(2)")
    addv(A, PS, PS, PS+4, 4)
    A("s_waitcnt lgkmcnt(0)")
    addv(A, PS+8, PS+8, PS+12, 4)
    addv(A, PS, PS, PS+8, 4)
    A(f"v_bfi_b32 v{PS}, 1, v{T+6}, v{PS}")
    A(f"buffer_store_dwordx4 v[{PS}:{PS+3}], v{V_L16}, {WSRD}, s{sPRw} offen sc1")
    A(f"s_add_u32 s{sS}, s{sS}, 1")
    offs(A)
    prep(A)
    delay(A, opt("ed", 128))
    er = [PS+4, PS+8, PS+12]
    el = [f"buffer_load_dwordx4 v[{r_}:{r_+3}], v{V_L16}, {WSRD}, s{so} offen sc1" for r_, so in zip(er, (sPR1, sPR2, sPR3))]
    for x in el: A(x)
    def bade(B, t):
        B(f"v_xor_b32 v{T+15}, v{er[t]}, v{T+6}")
        B(f"v_and_b32 v{T+15}, 1, v{T+15}")
        B(f"v_cmp_ne_u32 vcc, 0, v{T+15}")
    def proce(t):
        if t == 0: addv(A, PS+16, PS, PS+4, 4)
        if t == 2: addv(A, PS+20, PS+8, PS+12, 4)
    gather(A, tail, el, bade, proce, lexit, 88)
    st(A, 8, 33)
    addv(A, PS+16, PS+16, PS+20, 4)
    A(f"v_cvt_pk_bf16_f32 v{T+4}, v{PS+16}, v{PS+17}")
    A(f"v_cvt_pk_bf16_f32 v{T+5}, v{PS+18}, v{PS+19}")
    A(f"buffer_store_dwordx2 v[{T+4}:{T+5}], v{L8}, {WSRD}, s{sMEMw} offen {lf}")
    A("s_barrier")
    st(A, 9, 33)
    A(f"s_branch {lloop}")
    A(f"{lwait}:")
    lw2 = A.label("w2"); lwd = A.label("wd")
    A(f"s_cmp_eq_u32 s{w}, 1")
    A(f"s_cbranch_scc1 {lwd}")
    if hooks.get("pre_kv"): hooks["pre_kv"](A, lexit)
    A(f"s_cmp_eq_u32 s{w}, 2")
    A(f"s_cbranch_scc1 {lw2}")
    if "nokv" not in OPT: kv_dma(A, 3, sKVb)
    if "nokm" not in OPT: kmvm_store(A)
    if hooks.get("progress"): hooks["progress"](A)
    A(f"s_branch {lwd}")
    A(f"{lw2}:")
    if "nokv" not in OPT: kv_dma(A, 2, sKVb)
    A(f"{lwd}:")
    A(f"s_add_u32 s{sS}, s{sS}, 1")
    offs(A)
    prep(A)
    A("s_barrier")
    st(A, 9, 33)
    A(f"s_branch {lloop}")
    for stub in tail: stub(A)

def chain_role(A, hooks={}):
    w = S_W
    lexit = A.label("chexit"); lend = A.label("chend")
    dbg = f"s[{P_DBG}:{P_DBG+1}]"
    if parts.STAMPS:
        A("s_memrealtime s[80:81]"); A("s_waitcnt lgkmcnt(0)"); A("s_mov_b32 s33, s80")
    setup_consts(A)
    lnm = A.label("nomeas")
    A(f"s_lshl_b32 s52, s{sX}, 5")
    A(f"s_add_u32 s52, s52, s{sIDX}")
    A(f"s_lshl_b32 s53, s{w}, 7")
    A(f"s_add_u32 s52, s52, s53")
    A(f"s_cmp_ge_u32 s52, 2")
    A(f"s_cbranch_scc1 {lnm}")
    A(f"s_lshl_b32 s53, s52, 13")
    A(f"s_add_u32 s53, s53, s{bPR}")
    A(f"s_mov_b32 s54, -1")
    for k in range(3):
        A("s_memtime s[56:57]")
        A("s_waitcnt lgkmcnt(0)")
        A(f"buffer_store_dwordx4 v[{NEG1}:{NEG1+3}], v{V_L16}, {WSRD}, s53 offen sc1")
        A("s_waitcnt vmcnt(0)")
        A("s_memtime s[58:59]")
        A("s_waitcnt lgkmcnt(0)")
        A("s_sub_u32 s55, s58, s56")
        A("s_min_u32 s54, s54, s55")
    A(f"s_lshl_b32 s52, s52, 2")
    A(f"v_mov_b32 v{T+4}, s52")
    A(f"v_mov_b32 v{T+5}, s54")
    A(f"global_store_dword v{T+4}, v{T+5}, {dbg} offset:{D_LAT} sc1")
    A(f"{lnm}:")
    def init_ops(k):
        if k == 0:
            A(f"s_mov_b32 s{sCl}, 1"); clears(A, "sc1")
        if k == 1:
            for sl in range(4):
                for pg in range(2):
                    A(f"s_add_u32 s52, s{bPR}, {(sl << 16) + pg*8192}")
                    A(f"buffer_store_dwordx4 v[{NEG1}:{NEG1+3}], v{V_L16}, {WSRD}, s52 offen sc1")
        if k == 2:
            A(f"buffer_store_dwordx4 v[{NEG1}:{NEG1+3}], v{V_L16}, {WSRD}, s{bXX} offen sc1")
            A(f"buffer_store_dwordx2 v[{NEG1}:{NEG1+1}], v{L8}, {WSRD}, s{bOO} offen sc1")
        if k == 3:
            A(f"v_bfe_u32 v{T+4}, v0, 1, 3")
            A(f"v_lshlrev_b32 v{T+4}, 11, v{T+4}")
            A(f"v_bfe_u32 v{T+5}, v0, 4, 2")
            A(f"v_lshl_add_u32 v{T+4}, v{T+5}, 4, v{T+4}")
            A(f"v_and_b32 v{T+5}, 1, v0")
            A(f"v_lshl_add_u32 v{T+4}, v{T+5}, 3, v{T+4}")
            A(f"s_lshl_b32 s52, s{sIDX}, 6")
            A(f"v_add_u32 v{T+4}, s52, v{T+4}")
            A(f"global_load_dwordx2 v[{T+6}:{T+7}], v{T+4}, s[{P_MEM0}:{P_MEM0+1}]")
            A("s_waitcnt vmcnt(0)")
            A(f"buffer_store_dwordx2 v[{T+6}:{T+7}], v{L8}, {WSRD}, s{bMEM} offen sc1")
    per_wave(A, init_ops)
    g = load_weights(A)
    next(g)
    A("s_waitcnt vmcnt(32)")
    A("s_barrier")
    larr = A.label("arr")
    A(f"s_cmp_lg_u32 s{w}, 0")
    A(f"s_cbranch_scc1 {larr}")
    A("s_getreg_b32 s52, hwreg(HW_REG_XCC_ID)")
    A("s_and_b32 s52, s52, 15")
    A("s_lshl_b32 s52, 1, s52")
    A(f"v_mov_b32 v{T}, s52")
    A(f"s_lshl_b32 s53, s{sX}, 2")
    A(f"v_mov_b32 v{T+1}, s53")
    A(f"v_mov_b32 v{T+2}, 0")
    A(f"v_mov_b32 v{T+3}, 1")
    A("s_mov_b64 exec, 1")
    A(f"global_atomic_or v{T+1}, v{T}, {dbg} offset:{D_MASK} sc1")
    A("s_waitcnt vmcnt(0)")
    A(f"global_atomic_add v{T+2}, v{T+3}, {dbg} offset:{D_ARR} sc1")
    A("s_waitcnt vmcnt(0)")
    A("s_mov_b64 exec, -1")
    A(f"{larr}:")
    for _ in g: pass
    A("s_barrier")
    A(f"s_mov_b32 s{sS}, 0")
    offs(A)
    if hooks.get("wait_kv0"): hooks["wait_kv0"](A, lexit)
    def kv0(k):
        if k >= 2:
            kv_dma(A, k, sKVb)
            A(f"s_mov_b32 s52, 10240")
            kv_dma(A, k, 52)
    per_wave(A, kv0)
    lw = A.label("warr"); lok = A.label("warrok")
    A(f"v_mov_b32 v{T+2}, 0")
    A(f"s_lshl_b32 s53, s{sX}, 2")
    A(f"v_mov_b32 v{T+3}, s53")
    A(f"{lw}:")
    A(f"global_load_dword v{T+4}, v{T+2}, {dbg} sc1")
    A("s_waitcnt vmcnt(0)")
    A(f"v_readfirstlane_b32 s52, v{T+4}")
    A("s_cmp_ge_u32 s52, 128")
    A(f"s_cbranch_scc1 {lok}")
    retry(A, lw, lexit)
    A(f"{lok}:")
    A(f"global_load_dwordx2 v[{T}:{T+1}], v{T+2}, {dbg} offset:{D_LAT} sc1")
    A(f"global_load_dword v{T+4}, v{T+3}, {dbg} offset:{D_MASK} sc1")
    A("s_waitcnt vmcnt(0)")
    A(f"v_readfirstlane_b32 s52, v{T}")
    A(f"v_readfirstlane_b32 s53, v{T+1}")
    A(f"v_readfirstlane_b32 s54, v{T+4}")
    A("s_cmp_lt_u32 s53, s52")
    if "farpage" in OPT: A("s_cselect_b32 s52, 0, 8192")
    else: A("s_cselect_b32 s52, 8192, 0")
    A(f"s_add_u32 s{bPR}, s{bPR}, s52")
    A(f"s_bcnt1_i32_b32 s{SRD_W}, s54")
    offs(A)
    prep(A)
    A("s_barrier")
    if "steplog" in OPT:
        for k in range(8): A(f"s_mov_b32 s{82+k}, 0")
        A("s_memrealtime s[92:93]")
    if parts.STAMPS: A("s_memrealtime s[10:11]")
    lslow = A.label("slow"); lfin = A.label("fin")
    A(f"s_cmp_lg_u32 s{SRD_W}, 1")
    A(f"s_cbranch_scc1 {lslow}")
    step_body(A, "", lexit, A.label("loop"), lfin, hooks)
    A(f"{lslow}:")
    step_body(A, "sc1", lexit, A.label("loop"), lfin, hooks)
    A(f"{lexit}:")
    A(f"v_mov_b32 v{T}, 0")
    A(f"v_mov_b32 v{T+1}, s{sS}")
    A(f"v_add_u32 v{T+1}, 0x100, v{T+1}")
    A(f"global_store_dword v{T}, v{T+1}, {dbg} offset:{D_ERR}")
    A(f"s_branch {lend}")
    A(f"{lfin}:")
    A(f"s_cmp_lg_u32 s{w}, 3")
    A(f"s_cbranch_scc1 {lend}")
    kmvm_store(A)
    A(f"{lend}:")
    A("s_waitcnt vmcnt(0)")
    if hooks.get("fin"): hooks["fin"](A)
    if "steplog" in OPT:
        A(f"s_lshl_b32 s78, s2, 10"); A(f"s_lshl_b32 s77, s{S_W}, 8"); A("s_add_u32 s78, s78, s77"); A(f"s_add_u32 s78, s78, {parts.WS_STAMP}")
        A("s_memrealtime s[94:95]"); A("s_waitcnt lgkmcnt(0)"); A("s_sub_u32 s89, s94, s92")
        lz = A.label("z")
        A(f"s_cmp_eq_u32 s{S_W}, 3"); A(f"s_cbranch_scc1 {lz}")
        for k in range(8): A(f"v_writelane_b32 v0, s{82+k}, {k}")
        A(f"{lz}:")
        A(f"v_lshrrev_b32 v2, 2, v{V_L16}")
        A(f"buffer_store_dword v0, v2, {WSRD}, s78 offen")
    if parts.STAMPS:
        A("s_memrealtime s[100:101]")
        A("s_waitcnt lgkmcnt(0)")
        A("s_mov_b32 s81, s33"); A("s_mov_b32 s83, s10"); A("s_mov_b32 s85, s100")
        A(f"s_lshl_b32 s78, s2, 2"); A(f"s_add_u32 s78, s78, s{S_W}"); A(f"s_lshl_b32 s78, s78, 6"); A(f"s_add_u32 s78, s78, {parts.WS_STAMP}")
        A("v_mov_b32 v2, 0")
        for i, sr_ in enumerate([80, 82, 84, 86, 88, 90, 92, 94, 96, 98, 81, 83, 85]):
            A(f"v_mov_b32 v3, s{sr_}")
            A(f"buffer_store_dword v3, v2, {WSRD}, s78 offen offset:{4*i}")
            A("s_nop 1")
```

```python
NAME = "parallel_sum__memory_aug_recurrent_mem_tr__glu_gated_geglu__prompt"

KA_X, KA_MEM0, KA_WQ, KA_WK, KA_WV, KA_WO, KA_SEG, KA_BX, KA_WG, KA_WU, KA_WD, KA_OUT, KA_DBG, KA_WS = [8*i for i in range(14)]

MB = 1 << 20
WS_XN = 0 * MB
WS_Q  = 4 * MB
WS_K  = 20 * MB
WS_VT = 36 * MB
WS_H  = 52 * MB
WS_O  = 66 * MB
WS_KM = 82 * MB
WS_VM = 86 * MB
WS_CH = 90 * MB
WS_CNT = 94 * MB
WS_P  = 96 * MB
WS_SIZE = 256 * MB

class Asm:
    def __init__(self):
        self.lines = []
        self.uid = 0
    def __call__(self, s=""):
        for l in s.split("\n"):
            self.lines.append(l)
    def label(self, base):
        self.uid += 1
        return f"L_{base}_{self.uid}"
    def text(self):
        return "\n".join(self.lines) + "\n"

def vr(a, n=1):
    return f"v{a}" if n == 1 else f"v[{a}:{a+n-1}]"
def ar(a, n=1):
    return f"a{a}" if n == 1 else f"a[{a}:{a+n-1}]"
def sr(a, n=1):
    return f"s{a}" if n == 1 else f"s[{a}:{a+n-1}]"

def make_srd(A, d, ptr, nbytes):
    A(f"s_mov_b32 s{d}, s{ptr}")
    A(f"s_and_b32 s{d+1}, s{ptr+1}, 0xffff")
    A(f"s_mov_b32 s{d+2}, {nbytes:#x}")
    A(f"s_mov_b32 s{d+3}, 0x20000")

def kernel_header(A, name):
    A(".text")
    A(f".globl {name}")
    A(".p2align 8")
    A(f".type {name},@function")
    A(f"{name}:")

def kernel_desc(A, name, nv=512, ns=102, acc=256):
    A('.section .rodata,"a"')
    A(".p2align 6")
    A(f".amdhsa_kernel {name}")
    A(f"  .amdhsa_next_free_vgpr {nv}")
    A(f"  .amdhsa_next_free_sgpr {ns}")
    A(f"  .amdhsa_accum_offset {acc}")
    A("  .amdhsa_group_segment_fixed_size 0")
    A("  .amdhsa_kernarg_size 112")
    A("  .amdhsa_user_sgpr_count 2")
    A("  .amdhsa_user_sgpr_kernarg_segment_ptr 1")
    A("  .amdhsa_system_sgpr_workgroup_id_x 1")
    A("  .amdhsa_float_denorm_mode_32 3")
    A("  .amdhsa_float_denorm_mode_16_64 3")
    A(".end_amdhsa_kernel")

def interleave(A, mains, fillers, start=0, per=1):
    fi = 0
    for i, m in enumerate(mains):
        A(m)
        if i >= start:
            for _ in range(per):
                if fi < len(fillers):
                    A(fillers[fi]); fi += 1
    while fi < len(fillers):
        A(fillers[fi]); fi += 1
```

```python
from common import *
import parts
from parts import *

FS16 = [32, 96]
VWR16 = 10
def gemm_setup(A):
    w = S_W
    A(f"s_lshl_b32 s57, s{w}, 1")
    A(f"s_mul_i32 s57, s57, s{G_XT}")
    A(f"v_add_u32 v{VX0}, s57, v{V_L16}")
    A(f"s_sub_u32 s57, s{G_XT}, 2048")
    A(f"v_add_u32 v{VX1}, s57, v{VX0}")
    A(f"v_bfe_u32 v20, v0, 4, 2")
    A(f"v_and_b32 v21, 15, v0")
    A(f"v_lshlrev_b32 v22, 2, v20")
    A(f"v_xor_b32 v21, v21, v22")
    A(f"s_and_b32 s57, s{w}, 1")
    A(f"s_lshl_b32 s57, s57, 4")
    A(f"v_add_u32 v20, s57, v20")
    A(f"v_mul_lo_u32 v20, v20, s{G_RS}")
    A(f"s_lshl_b32 s57, s{G_RS}, 2")
    A(f"s_sub_u32 s57, s57, 1024")
    for i in range(4):
        if i & 1: A(f"v_xor_b32 v22, 1, v21")
        else: A(f"v_mov_b32 v22, v21")
        A(f"v_lshl_add_u32 v{VW0+i}, v22, 4, v20")
        A(f"v_add_u32 v20, s57, v20")
    A(f"s_lshl_b32 s{G_WSTEP}, s{G_RS}, 5")
    A(f"s_lshl_b32 s{G_M0}, s{w}, 12")
    A(f"s_lshr_b32 s57, s{w}, 1")
    A(f"s_lshl_b32 s57, s57, 13")
    A(f"v_and_b32 v20, 15, v0")
    A(f"v_lshlrev_b32 v20, 4, v20")
    A(f"v_bfe_u32 v21, v0, 4, 2")
    A(f"v_lshl_add_u32 v20, v21, 9, v20")
    A(f"v_add_u32 v{VXR}, s57, v20")
    A(f"v_add_u32 v{VXR+1}, 0x10000, v{VXR}")
    A(f"v_bfe_u32 v22, v0, 2, 2")
    A(f"v_bfe_u32 v23, v0, 4, 1")
    A(f"v_bfe_u32 v24, v0, 5, 1")
    A(f"v_lshl_add_u32 v25, v23, 2, v22")
    A(f"v_lshl_add_u32 v25, v24, 4, v25")
    A(f"v_lshlrev_b32 v25, 8, v25")
    A(f"v_and_b32 v26, 1, v0")
    A(f"v_lshl_add_u32 v25, v26, 3, v25")
    A(f"v_add_u32 v25, 16384, v25")
    A(f"v_lshl_add_u32 v26, v22, 2, v23")
    A(f"v_and_b32 v27, 2, v0")
    A(f"v_xor_b32 v26, v26, v27")
    A(f"s_and_b32 s57, s{w}, 1")
    A(f"s_lshl_b32 s57, s57, 3")
    for sub in range(2):
        for ab in range(2):
            A(f"s_add_u32 s58, s57, {sub*4+ab}")
            A(f"v_xor_b32 v27, s58, v26")
            d = VWR16 + (sub*2+ab)*2
            A(f"v_lshl_add_u32 v{d}, v27, 4, v25")
            A(f"v_add_u32 v{d+1}, 0x10000, v{d}")

def frag_reads(slot, fs):
    hi = slot >> 1
    so = (slot & 1) * 32768
    base = FS16[fs]
    X = [f"ds_read_b128 v[{base+4*mi}:{base+4*mi+3}], v{VXR+hi} offset:{so + (mi>>1)*2048 + (mi&1)*256}" for mi in range(8)]
    W = []
    for ni in range(8):
        hh, sa = ni >> 2, ni & 3
        for p in range(2):
            d = base + 32 + 4*ni + 2*p
            W.append(f"ds_read_b64_tr_b16 v[{d}:{d+1}], v{VWR16+sa*2+hi} offset:{so + hh*8192 + 8*p*256}")
    return W[0:2] + X + W[2:]

def mfmas(fs, swap, first=False):
    base = FS16[fs]
    L = []
    for ni in range(8):
        for mi in range(8):
            acc = (ni*8 + mi) * 4
            x = f"v[{base+4*mi}:{base+4*mi+3}]"
            wv = f"v[{base+32+4*ni}:{base+32+4*ni+3}]"
            a, b = (x, wv) if swap else (wv, x)
            c = "0" if first else f"a[{acc}:{acc+3}]"
            L.append(f"v_mfma_f32_16x16x32_bf16 a[{acc}:{acc+3}], {a}, {b}, {c}")
    return L

def kstep(A, slot, swap, dma, vm, last=False, first=False, lflag=""):
    fs = slot & 1
    m = mfmas(fs, swap, first)
    f = [] if last else frag_reads((slot+1) & 3, fs ^ 1)
    d = dma_stage(slot, lflag) if dma else []
    A("s_waitcnt lgkmcnt(0)")
    fi = 0; di = 0
    for i in range(64):
        A(m[i])
        if i == 0 and not last:
            A(f"s_waitcnt vmcnt({vm})")
            A("s_barrier")
        if i >= 2 and i % 2 == 0 and fi < len(f):
            A(f[fi]); fi += 1
        if i >= 5 and i % 6 == 5 and di < len(d):
            A(d[di]); di += 1
    assert fi == len(f) and di == len(d), (fi, di)

def gemm_main(A, swap, lflag=""):
    for s in range(4):
        for l in dma_stage(s, lflag): A(l)
    stamp(A, 1)
    A("s_waitcnt vmcnt(24)")
    A("s_barrier")
    stamp(A, 2); stamp(A, 3, True)
    for l in frag_reads(0, 0): A(l)
    for s in range(4):
        kstep(A, s, swap, True, 16, first=(s == 0), lflag=lflag)
    A(f"s_sub_u32 s{G_CNT}, s{G_CNT}, 2")
    lend = A.label("gl_end"); lloop = A.label("gl")
    A(f"s_cmp_eq_u32 s{G_CNT}, 0")
    A(f"s_cbranch_scc1 {lend}")
    A(f"{lloop}:")
    for s in range(4):
        kstep(A, s, swap, True, 16, lflag=lflag)
    A(f"s_sub_u32 s{G_CNT}, s{G_CNT}, 1")
    A(f"s_cmp_lg_u32 s{G_CNT}, 0")
    A(f"s_cbranch_scc1 {lloop}")
    A(f"{lend}:")
    kstep(A, 0, swap, False, 16)
    kstep(A, 1, swap, False, 8)
    kstep(A, 2, swap, False, 0)
    kstep(A, 3, swap, False, 0, last=True)
    A("s_nop 15")
    stamp(A, 4); stamp(A, 5, True)

VST = 18
def st_base(A):
    A(f"v_and_b32 v{VST}, 15, v0")
    A(f"v_lshlrev_b32 v{VST}, 4, v{VST}")
    A(f"v_bfe_u32 v19, v0, 4, 2")
    A(f"v_lshl_add_u32 v{VST}, v19, 9, v{VST}")

def epi_bf16(A, sflag="", swap=False):
    epi_addr(A)
    A(f"s_and_b32 s57, s{S_W}, 1")
    A(f"s_lshl_b32 s57, s57, 12")
    A(f"s_add_u32 s{G_OS}, s{G_OS}, s57")
    if not swap:
        st_base(A)
    else:
        A(f"v_and_b32 v{VST}, 3, v0")
        A(f"v_bfe_u32 v19, v0, 2, 1")
        A(f"v_lshl_add_u32 v{VST}, v19, 2, v{VST}")
        A(f"v_bfe_u32 v19, v0, 3, 1")
        A(f"v_lshl_add_u32 v{VST}, v19, 4, v{VST}")
        A(f"v_lshlrev_b32 v{VST}, 4, v{VST}")
        A(f"v_bfe_u32 v19, v0, 4, 2")
        A(f"v_lshl_add_u32 v{VST}, v19, 9, v{VST}")
    ws = f"s[{SRD_WS}:{SRD_WS+3}]"
    T = 160
    it = 0
    for tb in range(4):
        for hh in range(2):
            A(f"s_add_u32 s58, s{G_OS}, {hh*8192}")
            for sub in range(2):
                t = T + (it & 1) * 32
                it += 1
                for e in range(2):
                    if not swap:
                        tiles = [((hh*4 + sub*2 + ab)*8 + tb*2 + e)*4 for ab in range(2)]
                    else:
                        tiles = [((hh*4 + sub*2 + e)*8 + tb*2 + mh)*4 for mh in range(2)]
                    for k in range(2):
                        for r in range(4):
                            A(f"v_accvgpr_read_b32 v{t+8*e+4*k+r}, a{tiles[k]+r}")
                for r in range(8):
                    A(f"v_cvt_pk_bf16_f32 v{t+16+r}, v{t+2*r}, v{t+2*r+1}")
                if swap:
                    A("s_nop 1")
                    for e in range(2):
                        A(f"v_permlane32_swap_b32 v{t+16+4*e}, v{t+16+4*e+2}")
                        A(f"v_permlane32_swap_b32 v{t+16+4*e+1}, v{t+16+4*e+3}")
                step = 128 if swap else 256
                A(f"buffer_store_dwordx4 v[{t+16}:{t+19}], v{VST}, {ws}, s58 offen offset:{sub*2048} {sflag}")
                A(f"buffer_store_dwordx4 v[{t+20}:{t+23}], v{VST}, {ws}, s58 offen offset:{sub*2048+step} {sflag}")
        A(f"s_add_u32 s{G_OS}, s{G_OS}, s{G_OT}")

def epi_geglu(A, sflag=""):
    epi_addr(A)
    A(f"s_and_b32 s57, s{S_W}, 1")
    A(f"s_lshl_b32 s57, s57, 12")
    A(f"s_add_u32 s{G_OS}, s{G_OS}, s57")
    st_base(A)
    import math
    k = -2.0 * math.sqrt(2.0/math.pi) * math.log2(math.e)
    A(f"s_mov_b32 s58, {f32bits(k*0.044715):#x}")
    A(f"v_mov_b32 v19, {f32bits(k):#x}")
    ws = f"s[{SRD_WS}:{SRD_WS+3}]"
    T = 32
    it = 0
    for tb in range(4):
        for sub in range(2):
            t = T + (it & 1) * 64
            it += 1
            g, u, e, o = t, t+16, t+32, t+48
            for mh in range(2):
                for ab in range(2):
                    ag = ((sub*2+ab)*8 + tb*2 + mh)*4
                    for r in range(4):
                        A(f"v_accvgpr_read_b32 v{g+8*mh+4*ab+r}, a{ag+r}")
            for mh in range(2):
                for ab in range(2):
                    au = ((4+sub*2+ab)*8 + tb*2 + mh)*4
                    for r in range(4):
                        A(f"v_accvgpr_read_b32 v{u+8*mh+4*ab+r}, a{au+r}")
            for r in range(16):
                A(f"v_mul_f32 v{e+r}, v{g+r}, v{g+r}")
            for r in range(16):
                A(f"v_fma_f32 v{e+r}, v{e+r}, s58, v19")
            for r in range(16):
                A(f"v_mul_f32 v{e+r}, v{e+r}, v{g+r}")
            for r in range(16):
                A(f"v_exp_f32 v{e+r}, v{e+r}")
            for r in range(16):
                A(f"v_mul_f32 v{g+r}, v{g+r}, v{u+r}")
            for r in range(16):
                A(f"v_add_f32 v{e+r}, 1.0, v{e+r}")
            for r in range(16):
                A(f"v_rcp_f32 v{e+r}, v{e+r}")
            A("s_nop 0")
            for r in range(16):
                A(f"v_mul_f32 v{g+r}, v{g+r}, v{e+r}")
            for r in range(8):
                A(f"v_cvt_pk_bf16_f32 v{o+r}, v{g+2*r}, v{g+2*r+1}")
            A(f"buffer_store_dwordx4 v[{o}:{o+3}], v{VST}, {ws}, s{G_OS} offen offset:{sub*2048} {sflag}")
            A(f"buffer_store_dwordx4 v[{o+4}:{o+7}], v{VST}, {ws}, s{G_OS} offen offset:{sub*2048+256} {sflag}")
        A(f"s_add_u32 s{G_OS}, s{G_OS}, s{G_OT}")

def epi_f32(A, sflag=""):
    epi_addr(A)
    A(f"s_and_b32 s57, s{S_W}, 1")
    A(f"s_lshl_b32 s57, s57, 13")
    A(f"s_add_u32 s{G_OS}, s{G_OS}, s57")
    A(f"v_and_b32 v{VST}, 15, v0")
    A(f"v_lshlrev_b32 v{VST}, 4, v{VST}")
    A(f"v_bfe_u32 v19, v0, 4, 1")
    A(f"v_lshl_add_u32 v{VST}, v19, 9, v{VST}")
    A(f"v_bfe_u32 v19, v0, 5, 1")
    A(f"v_lshl_add_u32 v{VST}, v19, 11, v{VST}")
    ws = f"s[{SRD_WS}:{SRD_WS+3}]"
    for tb in range(4):
        for hs in range(4):
            hh, sub = hs >> 1, hs & 1
            A(f"s_add_u32 s58, s{G_OS}, {(hh*4+sub)*4096}")
            for ab in range(2):
                for mh in range(2):
                    acc = ((hh*4+sub*2+ab)*8 + tb*2 + mh)*4
                    A(f"buffer_store_dwordx4 a[{acc}:{acc+3}], v{VST}, {ws}, s58 offen offset:{ab*1024+mh*256} {sflag}")
        A(f"s_add_u32 s{G_OS}, s{G_OS}, s{G_OT}")
```

```python
from common import *

S_W = 3
SRD_WS = 4
SRD_W = 8
SRD_A = 12
SRD_B = 16
P_X, P_MEM0, P_WQ, P_WK, P_WV, P_WO = 20, 22, 24, 26, 28, 30
P_WG, P_WU, P_WD, P_OUT, P_DBG, P_WS = 36, 38, 40, 42, 44, 46
V_TID = 0
V_L16 = 1

def prologue(A):
    A("s_load_dwordx16 s[20:35], s[0:1], 0")
    A("s_load_dwordx8 s[36:43], s[0:1], 64")
    A("s_load_dwordx4 s[44:47], s[0:1], 96")
    A("v_lshrrev_b32 v2, 6, v0")
    A("v_and_b32 v1, 63, v0")
    A(f"v_readfirstlane_b32 s{S_W}, v2")
    A("v_lshlrev_b32 v1, 4, v1")
    A("s_waitcnt lgkmcnt(0)")
    make_srd(A, SRD_WS, P_WS, WS_SIZE)
    make_srd(A, SRD_A, P_X, 4*MB)
    make_srd(A, SRD_B, P_OUT, 4*MB)

STAMPS = False
WS_STAMP = 95 * MB
def stamp(A, i, real=False):
    if STAMPS:
        A(f"s_{'memrealtime' if real else 'memtime'} s[{80+2*i}:{81+2*i}]")
def stamp_dump(A, n, sid=2):
    if not STAMPS: return
    A("s_waitcnt lgkmcnt(0)")
    A(f"s_lshl_b32 s78, s{sid}, 2")
    A(f"s_add_u32 s78, s78, s{S_W}")
    A(f"s_lshl_b32 s78, s78, 6")
    A(f"s_add_u32 s78, s78, {WS_STAMP}")
    A("v_mov_b32 v2, 0")
    for i in range(n):
        A(f"v_mov_b32 v3, s{80+2*i}")
        A(f"buffer_store_dword v3, v2, s[{SRD_WS}:{SRD_WS+3}], s78 offen offset:{4*i}")
        A("s_nop 1")

def xreduce_add(A, v, t):
    A("s_nop 1")
    A(f"v_add_f32_dpp v{v}, v{v}, v{v} row_ror:8 row_mask:0xf bank_mask:0xf")
    A(f"v_mov_b32 v{t}, v{v}")
    A("s_nop 1")
    A(f"v_permlane16_swap_b32 v{v}, v{t}")
    A("s_nop 1")
    A(f"v_add_f32 v{v}, v{v}, v{t}")
    A(f"v_mov_b32 v{t}, v{v}")
    A("s_nop 1")
    A(f"v_permlane32_swap_b32 v{v}, v{t}")
    A("s_nop 1")
    A(f"v_add_f32 v{v}, v{v}, v{t}")

def bf16r(A, v):
    A(f"v_cvt_pk_bf16_f32 v{v}, v{v}, v{v}")
    A(f"v_and_b32 v{v}, 0xffff0000, v{v}")

def ln_task(A, sflag="", ldsbase=0):
    G = 48
    D = 16
    F = 32
    O = 64
    A("v_and_b32 v4, 7, v0")
    A("v_bfe_u32 v5, v0, 3, 3")
    A(f"s_lshl_b32 s49, s{G}, 14")
    A(f"s_lshl_b32 s50, s{S_W}, 9")
    A("s_add_u32 s49, s49, s50")
    A("v_lshlrev_b32 v6, 11, v4")
    A("v_lshl_add_u32 v6, v5, 5, v6")
    A(f"buffer_load_dwordx4 v[{D}:{D+3}], v6, s[{SRD_A}:{SRD_A+3}], s49 offen")
    A(f"buffer_load_dwordx4 v[{D+4}:{D+7}], v6, s[{SRD_A}:{SRD_A+3}], s49 offen offset:16")
    A(f"buffer_load_dwordx4 v[{D+8}:{D+11}], v6, s[{SRD_A}:{SRD_A+3}], s49 offen offset:256")
    A(f"buffer_load_dwordx4 v[{D+12}:{D+15}], v6, s[{SRD_A}:{SRD_A+3}], s49 offen offset:272")
    A(f"s_lshl_b32 s50, s{S_W}, 5")
    A(f"v_lshlrev_b32 v7, 2, v4")
    A(f"v_add_u32 v7, {ldsbase}, v7")
    A(f"v_add_u32 v8, s50, v7")
    A(f"s_lshr_b32 s50, s{G}, 2")
    A(f"s_lshl_b32 s50, s50, 16")
    A(f"s_and_b32 s51, s{G}, 3")
    A(f"s_lshl_b32 s51, s51, 7")
    A(f"s_add_u32 s50, s50, s51")
    A(f"s_lshl_b32 s51, s{S_W}, 14")
    A(f"s_add_u32 s50, s50, s51")
    A(f"s_add_u32 s50, s50, {WS_XN}")
    A(f"s_add_u32 s51, s50, 8192")
    A("v_lshlrev_b32 v9, 4, v4")
    A("v_lshl_add_u32 v9, v5, 10, v9")
    A("s_waitcnt vmcnt(0)")
    for i in range(16):
        A(f"v_lshlrev_b32 v{F+2*i}, 16, v{D+i}")
        A(f"v_and_b32 v{F+2*i+1}, 0xffff0000, v{D+i}")
    A(f"v_add_f32 v10, v{F}, v{F+1}")
    A(f"v_add_f32 v11, v{F+2}, v{F+3}")
    for i in range(4, 32, 2):
        A(f"v_add_f32 v10, v10, v{F+i}")
        A(f"v_add_f32 v11, v11, v{F+i+1}")
    A("v_add_f32 v10, v10, v11")
    xreduce_add(A, 10, 11)
    A("ds_write_b32 v8, v10")
    A("s_waitcnt lgkmcnt(0)")
    A("s_barrier")
    A("ds_read2_b32 v[12:13], v7 offset0:0 offset1:8")
    A("ds_read2_b32 v[14:15], v7 offset0:16 offset1:24")
    A("s_waitcnt lgkmcnt(0)")
    A("v_add_f32 v12, v12, v13")
    A("v_add_f32 v14, v14, v15")
    A("v_add_f32 v10, v12, v14")
    A("v_mul_f32 v10, 0x3a800000, v10")
    A(f"v_sub_f32 v12, v{F}, v10")
    A(f"v_sub_f32 v13, v{F+1}, v10")
    A(f"v_mul_f32 v11, v12, v12")
    A(f"v_mul_f32 v14, v13, v13")
    for i in range(2, 32, 2):
        A(f"v_sub_f32 v12, v{F+i}, v10")
        A(f"v_sub_f32 v13, v{F+i+1}, v10")
        A(f"v_fmac_f32 v11, v12, v12")
        A(f"v_fmac_f32 v14, v13, v13")
    A("v_add_f32 v11, v11, v14")
    xreduce_add(A, 11, 12)
    A(f"ds_write_b32 v8, v11 offset:128")
    A("s_waitcnt lgkmcnt(0)")
    A("s_barrier")
    A("ds_read2_b32 v[12:13], v7 offset0:32 offset1:40")
    A("ds_read2_b32 v[14:15], v7 offset0:48 offset1:56")
    A("s_waitcnt lgkmcnt(0)")
    A("v_add_f32 v12, v12, v13")
    A("v_add_f32 v14, v14, v15")
    A("v_add_f32 v11, v12, v14")
    A("v_mul_f32 v11, 0x3a800000, v11")
    bf16r(A, 10)
    bf16r(A, 11)
    A("v_add_f32 v11, 0x3727c5ac, v11")
    bf16r(A, 11)
    A("v_sqrt_f32 v11, v11")
    A("s_nop 0")
    bf16r(A, 11)
    A("v_rcp_f32 v11, v11")
    perm = [0, 1, 4, 5, 2, 3, 6, 7]
    for i in range(16):
        pos = (i // 8) * 8 + perm.index(i % 8)
        A(f"v_sub_f32 v12, v{F+2*i}, v10")
        A(f"v_sub_f32 v13, v{F+2*i+1}, v10")
        A(f"v_cvt_pk_bf16_f32 v12, v12, v13")
        A(f"v_and_b32 v13, 0xffff0000, v12")
        A(f"v_lshlrev_b32 v12, 16, v12")
        A(f"v_mul_f32 v12, v12, v11")
        A(f"v_mul_f32 v13, v13, v11")
        A(f"v_cvt_pk_bf16_f32 v{O+pos}, v12, v13")
    A(f"buffer_store_dwordx4 v[{O}:{O+3}], v9, s[{SRD_WS}:{SRD_WS+3}], s50 offen {sflag}")
    A(f"buffer_store_dwordx4 v[{O+4}:{O+7}], v9, s[{SRD_WS}:{SRD_WS+3}], s50 offen offset:512 {sflag}")
    A(f"buffer_store_dwordx4 v[{O+8}:{O+11}], v9, s[{SRD_WS}:{SRD_WS+3}], s51 offen {sflag}")
    A(f"buffer_store_dwordx4 v[{O+12}:{O+15}], v9, s[{SRD_WS}:{SRD_WS+3}], s51 offen offset:512 {sflag}")

G_XS, G_XT, G_WS, G_RS, G_CNT, G_OS, G_OT, G_M0, G_WSTEP = 48, 49, 50, 51, 52, 53, 54, 55, 56
VX0, VX1, VW0 = 2, 3, 4
VXR, VWR = 8, 10
FS = [32, 64]

def gemm_setup(A, lflag=""):
    w = S_W
    A(f"s_lshl_b32 s57, s{w}, 1")
    A(f"s_mul_i32 s57, s57, s{G_XT}")
    A(f"v_add_u32 v{VX0}, s57, v{V_L16}")
    A(f"s_sub_u32 s57, s{G_XT}, 2048")
    A(f"v_add_u32 v{VX1}, s57, v{VX0}")
    A(f"v_bfe_u32 v16, v0, 4, 2")
    A(f"v_bfe_u32 v17, v0, 2, 2")
    A(f"v_xor_b32 v17, v17, v16")
    A(f"v_and_b32 v18, 3, v0")
    A(f"v_lshlrev_b32 v18, 4, v18")
    A(f"v_lshl_add_u32 v18, v17, 6, v18")
    A(f"s_and_b32 s57, s{w}, 1")
    A(f"s_lshl_b32 s57, s57, 4")
    A(f"v_add_u32 v16, s57, v16")
    A(f"v_mul_lo_u32 v16, v16, s{G_RS}")
    A(f"v_add_u32 v{VW0}, v16, v18")
    A(f"s_lshl_b32 s57, s{G_RS}, 2")
    A(f"s_sub_u32 s57, s57, 1024")
    for i in range(1, 4):
        A(f"v_add_u32 v{VW0+i}, s57, v{VW0+i-1}")
    A(f"s_lshl_b32 s{G_WSTEP}, s{G_RS}, 5")
    A(f"s_lshl_b32 s{G_M0}, s{w}, 12")
    A(f"s_lshr_b32 s57, s{w}, 1")
    A(f"s_lshl_b32 s57, s57, 13")
    A(f"v_add_u32 v{VXR}, s57, v{V_L16}")
    A(f"v_add_u32 v{VXR+1}, 0x10000, v{VXR}")
    A(f"v_bfe_u32 v16, v0, 5, 1")
    A(f"v_bfe_u32 v17, v0, 2, 2")
    A(f"v_lshl_add_u32 v16, v16, 2, v17")
    A(f"v_lshlrev_b32 v16, 8, v16")
    A(f"v_bfe_u32 v18, v0, 4, 1")
    A(f"v_lshl_add_u32 v16, v18, 5, v16")
    A(f"v_and_b32 v18, 3, v0")
    A(f"v_lshl_add_u32 v16, v18, 3, v16")
    A(f"v_add_u32 v16, 16384, v16")
    A(f"s_and_b32 s57, s{w}, 1")
    A(f"s_lshl_b32 s57, s57, 1")
    for sub in range(2):
        A(f"s_add_u32 s58, s57, {sub}")
        A(f"v_xor_b32 v18, s58, v17")
        A(f"v_lshl_add_u32 v{VWR+2*sub}, v18, 6, v16")
        A(f"v_add_u32 v{VWR+2*sub+1}, 0x10000, v{VWR+2*sub}")

def dma_stage(slot, lflag=""):
    L = []
    ws = f"s[{SRD_WS}:{SRD_WS+3}]"
    sw = f"s[{SRD_W}:{SRD_W+3}]"
    L.append(f"s_add_u32 m0, s{G_M0}, {slot*32768}\ns_nop 0\nbuffer_load_dwordx4 v{VX0}, {ws}, s{G_XS} offen {lflag} lds")
    L.append(f"buffer_load_dwordx4 v{VX0}, {ws}, s{G_XS} offen offset:1024 {lflag} lds")
    L.append(f"buffer_load_dwordx4 v{VX1}, {ws}, s{G_XS} offen offset:2048 {lflag} lds")
    L.append(f"buffer_load_dwordx4 v{VX1}, {ws}, s{G_XS} offen offset:3072 {lflag} lds\ns_add_u32 s{G_XS}, s{G_XS}, 2048")
    L.append(f"s_add_u32 m0, s{G_M0}, {slot*32768+16384}\ns_nop 0\nbuffer_load_dwordx4 v{VW0}, {sw}, s{G_WS} offen lds")
    L.append(f"buffer_load_dwordx4 v{VW0+1}, {sw}, s{G_WS} offen offset:1024 lds")
    L.append(f"buffer_load_dwordx4 v{VW0+2}, {sw}, s{G_WS} offen offset:2048 lds")
    L.append(f"buffer_load_dwordx4 v{VW0+3}, {sw}, s{G_WS} offen offset:3072 lds\ns_add_u32 s{G_WS}, s{G_WS}, s{G_WSTEP}")
    return L

def frag_reads(slot, c, fs):
    hi = slot >> 1
    so = (slot & 1) * 32768
    base = FS[fs]
    X = [f"ds_read_b128 v[{base+4*mi}:{base+4*mi+3}], v{VXR+hi} offset:{so + mi*2048 + c*1024}" for mi in range(4)]
    W = []
    for ni in range(4):
        hh, sub = ni >> 1, ni & 1
        for p in range(2):
            d = base + 16 + 4*ni + 2*p
            W.append(f"ds_read_b64_tr_b16 v[{d}:{d+1}], v{VWR+2*sub+hi} offset:{so + hh*8192 + (16*c+8*p)*256}")
    return W[0:2] + X + W[2:]

def mfmas(fs, swap, first=False):
    base = FS[fs]
    L = []
    for ni in range(4):
        for mi in range(4):
            acc = (ni*4 + mi) * 16
            x = f"v[{base+4*mi}:{base+4*mi+3}]"
            wv = f"v[{base+16+4*ni}:{base+16+4*ni+3}]"
            a, b = (x, wv) if swap else (wv, x)
            c = "0" if first else f"a[{acc}:{acc+15}]"
            L.append(f"v_mfma_f32_32x32x16_bf16 a[{acc}:{acc+15}], {a}, {b}, {c}")
    return L

def kstep(A, slot, swap, dma, vm, last=False, first=False, lflag=""):
    m = mfmas(0, swap, first)
    f = frag_reads(slot, 1, 1)
    A("s_waitcnt lgkmcnt(0)")
    for i in range(16):
        A(m[i])
        if i < 12: A(f[i])
        if i == 14 and not last:
            A(f"s_waitcnt vmcnt({vm}) lgkmcnt(0)")
            A("s_barrier")
    if last:
        A("s_waitcnt lgkmcnt(0)")
    m = mfmas(1, swap)
    f = [] if last else frag_reads((slot+1) & 3, 0, 0)
    d = dma_stage(slot, lflag) if dma else []
    for i in range(16):
        A(m[i])
        if i < len(f): A(f[i])
        if i >= 4 and (i-4) < len(d) and False: pass
        if d and i >= 8: A(d[i-8])

def gemm_main(A, swap, lflag=""):
    for s in range(4):
        for l in dma_stage(s, lflag): A(l)
    stamp(A, 1)
    A("s_waitcnt vmcnt(24)")
    A("s_barrier")
    stamp(A, 2); stamp(A, 3, True)
    for l in frag_reads(0, 0, 0): A(l)
    for s in range(4):
        kstep(A, s, swap, True, 16, first=(s == 0), lflag=lflag)
    A(f"s_sub_u32 s{G_CNT}, s{G_CNT}, 2")
    lend = A.label("gl_end"); lloop = A.label("gl")
    A(f"s_cmp_eq_u32 s{G_CNT}, 0")
    A(f"s_cbranch_scc1 {lend}")
    A(f"{lloop}:")
    for s in range(4):
        kstep(A, s, swap, True, 16, lflag=lflag)
    A(f"s_sub_u32 s{G_CNT}, s{G_CNT}, 1")
    A(f"s_cmp_lg_u32 s{G_CNT}, 0")
    A(f"s_cbranch_scc1 {lloop}")
    A(f"{lend}:")
    kstep(A, 0, swap, False, 16)
    kstep(A, 1, swap, False, 8)
    kstep(A, 2, swap, False, 0)
    kstep(A, 3, swap, False, 0, last=True)
    A("s_nop 15")
    stamp(A, 4); stamp(A, 5, True)

def epi_addr(A):
    A(f"s_lshr_b32 s57, s{S_W}, 1")
    A(f"s_lshl_b32 s57, s57, 2")
    A(f"s_mul_i32 s57, s57, s{G_OT}")
    A(f"s_add_u32 s{G_OS}, s{G_OS}, s57")

def epi_bf16(A, sflag="", swap=False):
    epi_addr(A)
    A(f"s_and_b32 s57, s{S_W}, 1")
    A(f"s_lshl_b32 s57, s57, 12")
    A(f"s_add_u32 s{G_OS}, s{G_OS}, s57")
    ws = f"s[{SRD_WS}:{SRD_WS+3}]"
    T = 96
    it = 0
    for mi in range(4):
        for hh in range(2):
            A(f"s_add_u32 s58, s{G_OS}, {hh*8192}")
            for sub in range(2):
                ni = hh*2 + sub
                acc = (ni*4 + mi)*16
                t = T + (it & 1) * 32
                it += 1
                for r in range(16):
                    A(f"v_accvgpr_read_b32 v{t+r}, a{acc+r}")
                for r in range(8):
                    A(f"v_cvt_pk_bf16_f32 v{t+16+r}, v{t+2*r}, v{t+2*r+1}")
                A(f"buffer_store_dwordx4 v[{t+16}:{t+19}], v{V_L16}, {ws}, s58 offen offset:{sub*2048} {sflag}")
                A(f"buffer_store_dwordx4 v[{t+20}:{t+23}], v{V_L16}, {ws}, s58 offen offset:{sub*2048+1024} {sflag}")
        A(f"s_add_u32 s{G_OS}, s{G_OS}, s{G_OT}")

import struct
def f32bits(x):
    return struct.unpack("<I", struct.pack("<f", x))[0]

def epi_geglu(A, sflag=""):
    epi_addr(A)
    A(f"s_and_b32 s57, s{S_W}, 1")
    A(f"s_lshl_b32 s57, s57, 12")
    A(f"s_add_u32 s{G_OS}, s{G_OS}, s57")
    import math
    k = -2.0 * math.sqrt(2.0/math.pi) * math.log2(math.e)
    A(f"s_mov_b32 s58, {f32bits(k*0.044715):#x}")
    A(f"v_mov_b32 v15, {f32bits(k):#x}")
    ws = f"s[{SRD_WS}:{SRD_WS+3}]"
    T = 96
    it = 0
    for mi in range(4):
        for sub in range(2):
            ag = (sub*4 + mi)*16
            au = ((2+sub)*4 + mi)*16
            t = T + (it & 1) * 64
            it += 1
            g, u, e, o = t, t+16, t+32, t+48
            for r in range(16):
                A(f"v_accvgpr_read_b32 v{g+r}, a{ag+r}")
            for r in range(16):
                A(f"v_accvgpr_read_b32 v{u+r}, a{au+r}")
            for r in range(16):
                A(f"v_mul_f32 v{e+r}, v{g+r}, v{g+r}")
            for r in range(16):
                A(f"v_fma_f32 v{e+r}, v{e+r}, s58, v15")
            for r in range(16):
                A(f"v_mul_f32 v{e+r}, v{e+r}, v{g+r}")
            for r in range(16):
                A(f"v_exp_f32 v{e+r}, v{e+r}")
            for r in range(16):
                A(f"v_mul_f32 v{g+r}, v{g+r}, v{u+r}")
            for r in range(16):
                A(f"v_add_f32 v{e+r}, 1.0, v{e+r}")
            for r in range(16):
                A(f"v_rcp_f32 v{e+r}, v{e+r}")
            A("s_nop 0")
            for r in range(16):
                A(f"v_mul_f32 v{g+r}, v{g+r}, v{e+r}")
            for r in range(8):
                A(f"v_cvt_pk_bf16_f32 v{o+r}, v{g+2*r}, v{g+2*r+1}")
            A(f"buffer_store_dwordx4 v[{o}:{o+3}], v{V_L16}, {ws}, s{G_OS} offen offset:{sub*2048} {sflag}")
            A(f"buffer_store_dwordx4 v[{o+4}:{o+7}], v{V_L16}, {ws}, s{G_OS} offen offset:{sub*2048+1024} {sflag}")
        A(f"s_add_u32 s{G_OS}, s{G_OS}, s{G_OT}")

def epi_f32(A, sflag=""):
    epi_addr(A)
    A(f"s_and_b32 s57, s{S_W}, 1")
    A(f"s_lshl_b32 s57, s57, 13")
    A(f"s_add_u32 s{G_OS}, s{G_OS}, s57")
    ws = f"s[{SRD_WS}:{SRD_WS+3}]"
    for mi in range(4):
        for ni in range(4):
            hh, sub = ni >> 1, ni & 1
            acc = (ni*4 + mi)*16
            A(f"s_add_u32 s58, s{G_OS}, {(hh*4+sub)*4096}")
            for q in range(4):
                A(f"buffer_store_dwordx4 a[{acc+4*q}:{acc+4*q+3}], v{V_L16}, {ws}, s58 offen offset:{q*1024} {sflag}")
        A(f"s_add_u32 s{G_OS}, s{G_OS}, s{G_OT}")
```

```python
from common import *
from parts import *
import math
import parts, gemm16
G = parts
def use16(on):
    global G
    G = gemm16 if on else parts

def g1_task(A, tag, sflag="", lflag=""):
    lgu = A.label("gu"); lv = A.label("v"); ldone = A.label("done")
    A(f"s_lshl_b32 s{G_XS}, s60, 19")
    A(f"s_add_u32 s{G_XS}, s{G_XS}, {WS_XN}")
    A(f"s_mov_b32 s{G_XT}, 65536")
    A(f"s_mov_b32 s{G_CNT}, 8")
    A(f"s_lshr_b32 s59, s{S_W}, 1")
    A("s_cmp_ge_u32 s61, 48")
    A(f"s_cbranch_scc1 {lgu}")
    A("s_lshr_b32 s62, s61, 4")
    A("s_and_b32 s63, s61, 15")
    A("s_cmp_eq_u32 s62, 1")
    A(f"s_cselect_b32 s{SRD_W}, s{P_WV}, s{P_WK}")
    A(f"s_cselect_b32 s{SRD_W+1}, s{P_WV+1}, s{P_WK+1}")
    A(f"s_mov_b32 s{G_OS}, {WS_K}")
    A(f"s_cselect_b32 s{G_OS}, {WS_VT}, s{G_OS}")
    A("s_cmp_eq_u32 s62, 2")
    A(f"s_cselect_b32 s{SRD_W}, s{P_WQ}, s{SRD_W}")
    A(f"s_cselect_b32 s{SRD_W+1}, s{P_WQ+1}, s{SRD_W+1}")
    A(f"s_cselect_b32 s{G_OS}, {WS_Q}, s{G_OS}")
    A(f"s_and_b32 s{SRD_W+1}, s{SRD_W+1}, 0xffff")
    A(f"s_mov_b32 s{SRD_W+2}, {8*MB}")
    A(f"s_mov_b32 s{SRD_W+3}, 0x20000")
    A(f"s_mov_b32 s{G_RS}, 8192")
    A(f"s_lshl_b32 s{G_WS}, s63, 9")
    A(f"s_lshl_b32 s59, s59, 8")
    A(f"s_add_u32 s{G_WS}, s{G_WS}, s59")
    A(f"s_lshl_b32 s59, s60, 21")
    A(f"s_add_u32 s{G_OS}, s{G_OS}, s59")
    A(f"s_lshl_b32 s59, s63, 14")
    A(f"s_add_u32 s{G_OS}, s{G_OS}, s59")
    A(f"s_mov_b32 s{G_OT}, {256*1024}")
    G.gemm_setup(A)
    A("s_cmp_eq_u32 s62, 1")
    A(f"s_cbranch_scc1 {lv}")
    lq = A.label("qk")
    G.gemm_main(A, False, lflag)
    G.epi_bf16(A, sflag)
    A(f"s_branch {ldone}")
    A(f"{lv}:")
    G.gemm_main(A, True, lflag)
    G.epi_bf16(A, sflag, swap=True)
    A(f"s_branch {ldone}")
    A(f"{lgu}:")
    A("s_sub_u32 s63, s61, 48")
    A("s_cmp_eq_u32 s59, 1")
    A(f"s_cselect_b32 s{SRD_W}, s{P_WU}, s{P_WG}")
    A(f"s_cselect_b32 s{SRD_W+1}, s{P_WU+1}, s{P_WG+1}")
    A(f"s_and_b32 s{SRD_W+1}, s{SRD_W+1}, 0xffff")
    A(f"s_mov_b32 s{SRD_W+2}, {7*MB}")
    A(f"s_mov_b32 s{SRD_W+3}, 0x20000")
    A(f"s_mov_b32 s{G_RS}, 7168")
    A(f"s_lshl_b32 s{G_WS}, s63, 8")
    A(f"s_mul_i32 s{G_OS}, s60, {8*224*1024}")
    A(f"s_lshl_b32 s59, s63, 13")
    A(f"s_add_u32 s{G_OS}, s{G_OS}, s59")
    A(f"s_add_u32 s{G_OS}, s{G_OS}, {WS_H}")
    A(f"s_mov_b32 s{G_OT}, {224*1024}")
    G.gemm_setup(A)
    G.gemm_main(A, False, lflag)
    G.epi_geglu(A, sflag)
    A(f"{ldone}:")

def g2_task(A, tag, sflag="", lflag=""):
    lo = A.label("o"); lgo = A.label("go")
    A(f"s_lshr_b32 s59, s{S_W}, 1")
    A(f"s_lshl_b32 s59, s59, 8")
    A(f"s_lshl_b32 s{G_WS}, s61, 9")
    A(f"s_add_u32 s{G_WS}, s{G_WS}, s59")
    A(f"s_mov_b32 s{G_RS}, 2048")
    A(f"s_mov_b32 s{SRD_W+3}, 0x20000")
    A("s_cmp_ge_u32 s62, 2")
    A(f"s_cbranch_scc1 {lo}")
    A(f"s_mov_b32 s{SRD_W}, s{P_WD}")
    A(f"s_and_b32 s{SRD_W+1}, s{P_WD+1}, 0xffff")
    A(f"s_mov_b32 s{SRD_W+2}, {7*MB}")
    A(f"s_mul_i32 s59, s62, {1792*2048}")
    A(f"s_add_u32 s{G_WS}, s{G_WS}, s59")
    A(f"s_mul_i32 s{G_XS}, s60, {8*224*1024}")
    A(f"s_mul_i32 s59, s62, {112*1024}")
    A(f"s_add_u32 s{G_XS}, s{G_XS}, s59")
    A(f"s_add_u32 s{G_XS}, s{G_XS}, {WS_H}")
    A(f"s_mov_b32 s{G_XT}, {224*1024}")
    A(f"s_mov_b32 s{G_CNT}, 14")
    A(f"s_branch {lgo}")
    A(f"{lo}:")
    A(f"s_mov_b32 s{SRD_W}, s{P_WO}")
    A(f"s_and_b32 s{SRD_W+1}, s{P_WO+1}, 0xffff")
    A(f"s_mov_b32 s{SRD_W+2}, {8*MB}")
    A(f"s_cmp_eq_u32 s63, 16")
    A(f"s_cselect_b32 s58, 2, 0")
    A(f"s_cselect_b32 s{G_CNT}, 2, 8")
    A(f"s_sub_u32 s63, s62, 2")
    A(f"s_lshl_b32 s59, s63, 21")
    A(f"s_lshr_b32 s59, s59, s58")
    A(f"s_add_u32 s{G_WS}, s{G_WS}, s59")
    A(f"s_lshl_b32 s{G_XS}, s60, 21")
    A(f"s_lshl_b32 s59, s63, 16")
    A(f"s_lshr_b32 s59, s59, s58")
    A(f"s_add_u32 s{G_XS}, s{G_XS}, s59")
    A(f"s_add_u32 s{G_XS}, s{G_XS}, {WS_O}")
    A(f"s_mov_b32 s{G_XT}, {256*1024}")
    A(f"{lgo}:")
    A(f"s_lshl_b32 s{G_OS}, s62, 23")
    A(f"s_lshl_b32 s59, s60, 20")
    A(f"s_add_u32 s{G_OS}, s{G_OS}, s59")
    A(f"s_lshl_b32 s59, s61, 15")
    A(f"s_add_u32 s{G_OS}, s{G_OS}, s59")
    A(f"s_add_u32 s{G_OS}, s{G_OS}, {WS_P}")
    A(f"s_mov_b32 s{G_OT}, {128*1024}")
    G.gemm_setup(A)
    G.gemm_main(A, False, lflag)
    G.epi_f32(A, sflag)

def fin_task(A, nparts, lflag=""):
    ws = f"s[{SRD_WS}:{SRD_WS+3}]"
    A("s_lshl_b32 s48, s61, 3")
    A(f"s_lshl_b32 s49, s{S_W}, 1")
    A("s_add_u32 s48, s48, s49")
    A("s_lshl_b32 s49, s60, 17")
    A("s_lshl_b32 s50, s48, 12")
    A("s_add_u32 s49, s49, s50")
    A(f"s_add_u32 s49, s49, {WS_P}")
    A("v_and_b32 v2, 31, v0")
    A("v_bfe_u32 v3, v0, 5, 1")
    A("v_lshlrev_b32 v2, 11, v2")
    A("v_lshl_add_u32 v2, v3, 3, v2")
    A("s_lshl_b32 s50, s60, 16")
    A("s_lshl_b32 s51, s48, 6")
    A("s_add_u32 s50, s50, s51")
    X = 16
    P = 32
    for t in range(2):
        for q in range(4):
            A(f"buffer_load_dwordx2 v[{X+8*t+2*q}:{X+8*t+2*q+1}], v2, s[{SRD_A}:{SRD_A+3}], s50 offen offset:{t*64+q*16}")
    for p in range(nparts):
        for t in range(2):
            if t == 1: A("s_add_u32 s51, s49, 4096")
            so = "s49" if t == 0 else "s51"
            for q in range(4):
                d = P + 32*p + 16*t + 4*q
                A(f"buffer_load_dwordx4 v[{d}:{d+3}], v{V_L16}, {ws}, {so} offen offset:{q*1024} {lflag}")
        A(f"s_add_u32 s49, s49, {8*MB}")
    for p in range(1, nparts):
        A(f"s_waitcnt vmcnt({8*(nparts-1-p)})")
        for r in range(0, 32, 2):
            A(f"v_pk_add_f32 v[{P+r}:{P+r+1}], v[{P+r}:{P+r+1}], v[{P+32*p+r}:{P+32*p+r+1}]")
    for i in range(16):
        A(f"v_lshlrev_b32 v4, 16, v{X+i}")
        A(f"v_and_b32 v5, 0xffff0000, v{X+i}")
        A(f"v_add_f32 v4, v4, v{P+2*i}")
        A(f"v_add_f32 v5, v5, v{P+2*i+1}")
        A(f"v_cvt_pk_bf16_f32 v{X+i}, v4, v5")
    for t in range(2):
        for q in range(4):
            A(f"buffer_store_dwordx2 v[{X+8*t+2*q}:{X+8*t+2*q+1}], v2, s[{SRD_B}:{SRD_B+3}], s50 offen offset:{t*64+q*16}")

def attn_task(A, sflag="", lflag=""):
    ws = f"s[{SRD_WS}:{SRD_WS+3}]"
    Q, K, V, KM, VM = 16, 48, 80, 112, 144
    SX, SM, MASK, P, PM = 160, 176, 192, 208, 216
    A("s_lshl_b32 s48, s61, 2")
    A(f"s_add_u32 s48, s48, s{S_W}")
    A("s_lshl_b32 s49, s60, 18")
    A("s_lshl_b32 s50, s48, 13")
    A("s_add_u32 s49, s49, s50")
    A("s_lshl_b32 s50, s60, 16")
    A("s_lshl_b32 s51, s48, 11")
    A("s_add_u32 s50, s50, s51")
    def load8(dst, base):
        A(f"s_add_u32 s52, s49, {base}")
        A(f"s_add_u32 s53, s49, {base+4096}")
        for c in range(8):
            A(f"buffer_load_dwordx4 v[{dst+4*c}:{dst+4*c+3}], v{V_L16}, {ws}, s{52 + c//4} offen offset:{(c%4)*1024} {lflag}")
    load8(K, WS_K)
    load8(Q, WS_Q)
    A("v_bfe_u32 v3, v0, 5, 1")
    A("v_and_b32 v4, 7, v0")
    A("v_lshlrev_b32 v4, 4, v4")
    A("v_lshl_add_u32 v4, v3, 7, v4")
    A(f"s_add_u32 s52, s50, {WS_KM}")
    for c in range(8):
        A(f"buffer_load_dwordx4 v[{KM+4*c}:{KM+4*c+3}], v4, {ws}, s52 offen offset:{c*256} {lflag}")
    load8(V, WS_VT)
    A(f"v_lshrrev_b32 v5, 1, v{V_L16}")
    A(f"s_add_u32 s52, s50, {WS_VM}")
    for t in range(4):
        A(f"buffer_load_dwordx2 v[{VM+4*t}:{VM+4*t+1}], v5, {ws}, s52 offen offset:{t*512} {lflag}")
        A(f"v_mov_b32 v{VM+4*t+2}, 0")
        A(f"v_mov_b32 v{VM+4*t+3}, 0")
    A("v_and_b32 v6, 31, v0")
    A("v_lshlrev_b32 v7, 2, v3")
    A("v_sub_u32 v6, v6, v7")
    A(f"v_mov_b32 v7, {f32bits(-1e30):#x}")
    for r in range(16):
        key = 8*(r >> 2) + (r & 3)
        A(f"v_cmp_gt_i32 vcc, {key}, v6")
        A("s_nop 1")
        A(f"v_cndmask_b32 v{MASK+r}, 0, v7, vcc")
    A(f"v_mov_b32 v{PM+2}, 0")
    A(f"v_mov_b32 v{PM+3}, 0")
    A("s_waitcnt vmcnt(20)")
    for c in range(8):
        cc = f"v[{MASK}:{MASK+15}]" if c == 0 else f"v[{SX}:{SX+15}]"
        A(f"v_mfma_f32_32x32x16_bf16 v[{SX}:{SX+15}], v[{K+4*c}:{K+4*c+3}], v[{Q+4*c}:{Q+4*c+3}], {cc}")
    A("s_waitcnt vmcnt(12)")
    for c in range(8):
        cc = "0" if c == 0 else f"v[{SM}:{SM+15}]"
        A(f"v_mfma_f32_32x32x16_bf16 v[{SM}:{SM+15}], v[{KM+4*c}:{KM+4*c+3}], v[{Q+4*c}:{Q+4*c+3}], {cc}")
    A("s_nop 15")
    vals = [SX+r for r in range(16)] + [SM+r for r in range(4)]
    A(f"v_max3_f32 v8, v{vals[0]}, v{vals[1]}, v{vals[2]}")
    for i in range(3, 19, 2):
        A(f"v_max3_f32 v8, v8, v{vals[i]}, v{vals[i+1]}")
    A(f"v_max_f32 v8, v8, v{vals[19]}")
    A("v_mov_b32 v9, v8")
    A("s_nop 1")
    A("v_permlane32_swap_b32 v8, v9")
    A("s_nop 1")
    A("v_max_f32 v8, v8, v9")
    cs = 128 ** -0.5 * math.log2(math.e)
    A(f"s_mov_b32 s54, {f32bits(cs):#x}")
    A("v_mul_f32 v8, s54, v8")
    for v in vals:
        A(f"v_fma_f32 v{v}, v{v}, s54, -v8")
    for v in vals:
        A(f"v_exp_f32 v{v}, v{v}")
    A("s_nop 0")
    for i in range(8):
        A(f"v_cvt_pk_bf16_f32 v{P+i}, v{SX+2*i}, v{SX+2*i+1}")
    for i in range(2):
        A(f"v_cvt_pk_bf16_f32 v{PM+i}, v{SM+2*i}, v{SM+2*i+1}")
    A(f"v_add_f32 v8, v{vals[0]}, v{vals[1]}")
    A(f"v_add_f32 v9, v{vals[2]}, v{vals[3]}")
    for i in range(4, 20, 2):
        A(f"v_add_f32 v8, v8, v{vals[i]}")
        A(f"v_add_f32 v9, v9, v{vals[i+1]}")
    A("v_add_f32 v8, v8, v9")
    A("v_mov_b32 v9, v8")
    A("s_nop 1")
    A("v_permlane32_swap_b32 v8, v9")
    A("s_nop 1")
    A("v_add_f32 v8, v8, v9")
    A("v_rcp_f32 v8, v8")
    A("s_waitcnt vmcnt(0)")
    for t in range(4):
        o = Q + 16*t
        A(f"v_mfma_f32_32x32x16_bf16 v[{o}:{o+15}], v[{V+8*t}:{V+8*t+3}], v[{P}:{P+3}], 0")
    for t in range(4):
        o = Q + 16*t
        A(f"v_mfma_f32_32x32x16_bf16 v[{o}:{o+15}], v[{V+8*t+4}:{V+8*t+7}], v[{P+4}:{P+7}], v[{o}:{o+15}]")
    for t in range(4):
        o = Q + 16*t
        A(f"v_mfma_f32_32x32x16_bf16 v[{o}:{o+15}], v[{VM+4*t}:{VM+4*t+3}], v[{PM}:{PM+3}], v[{o}:{o+15}]")
    A(f"s_add_u32 s52, s49, {WS_O}")
    A(f"s_add_u32 s53, s49, {WS_O+4096}")
    A("s_nop 7")
    for t in range(4):
        o = Q + 16*t
        if t == 3: A("s_nop 7")
        for r in range(16):
            A(f"v_mul_f32 v{o+r}, v{o+r}, v8")
        d = V + 8*t
        for r in range(8):
            A(f"v_cvt_pk_bf16_f32 v{d+r}, v{o+2*r}, v{o+2*r+1}")
        for c in range(2):
            k = 2*t + c
            A(f"buffer_store_dwordx4 v[{d+4*c}:{d+4*c+3}], v{V_L16}, {ws}, s{52 + k//4} offen offset:{(k%4)*1024} {sflag}")

def fin_fine(A, nparts, lflag=""):
    ws = f"s[{SRD_WS}:{SRD_WS+3}]"
    A("s_lshl_b32 s48, s61, 2")
    A(f"s_add_u32 s48, s48, s{S_W}")
    A("s_lshl_b32 s49, s60, 17")
    A("s_lshl_b32 s50, s48, 11")
    A("s_add_u32 s49, s49, s50")
    A(f"s_add_u32 s49, s49, {WS_P}")
    A("v_and_b32 v2, 31, v0")
    A("v_bfe_u32 v3, v0, 5, 1")
    A("v_lshlrev_b32 v2, 11, v2")
    A("v_lshl_add_u32 v2, v3, 3, v2")
    A("s_lshl_b32 s50, s60, 16")
    A("s_lshl_b32 s51, s48, 5")
    A("s_add_u32 s50, s50, s51")
    X = 16; P = 32
    for q in range(2):
        A(f"buffer_load_dwordx2 v[{X+2*q}:{X+2*q+1}], v2, s[{SRD_A}:{SRD_A+3}], s50 offen offset:{q*16}")
    for p in range(nparts):
        for q in range(2):
            d = P + 8*p + 4*q
            A(f"buffer_load_dwordx4 v[{d}:{d+3}], v{V_L16}, {ws}, s49 offen offset:{q*1024} {lflag}")
        A(f"s_add_u32 s49, s49, {8*MB}")
    for p in range(1, nparts):
        A(f"s_waitcnt vmcnt({2*(nparts-1-p)})")
        for r in range(0, 8, 2):
            A(f"v_pk_add_f32 v[{P+r}:{P+r+1}], v[{P+r}:{P+r+1}], v[{P+8*p+r}:{P+8*p+r+1}]")
    for i in range(4):
        A(f"v_lshlrev_b32 v4, 16, v{X+i}")
        A(f"v_and_b32 v5, 0xffff0000, v{X+i}")
        A(f"v_add_f32 v4, v4, v{P+2*i}")
        A(f"v_add_f32 v5, v5, v{P+2*i+1}")
        A(f"v_cvt_pk_bf16_f32 v{X+i}, v4, v5")
    for q in range(2):
        A(f"buffer_store_dwordx2 v[{X+2*q}:{X+2*q+1}], v2, s[{SRD_B}:{SRD_B+3}], s50 offen offset:{q*16}")
```

```python
import heapq

C_LN, C_KV, C_Q, C_H, C_AT, C_P = 0, 8, 16, 24, 32, 40
C_PROG, C_FIN = 48, 49
T_END, T_G1, T_G2, T_AT, T_FIN = 0, 1, 2, 3, 4

class Task:
    def __init__(s, typ, a, b, c, d, deps, sig, dur, grp=None, name=""):
        s.typ, s.a, s.b, s.c, s.d, s.deps, s.sig, s.dur, s.grp, s.name = typ, a, b, c, d, deps, sig, dur, grp, name

def build(P):
    tile = P["tile"]; t0 = P["chain_start"]; step = P["step"]
    last_split = P.get("last_split", 16)
    nparts = {mb: (2 + (last_split if mb == 7 else 4)) for mb in range(8)}
    tasks = []
    def g1(mb, nt):
        sig = C_KV + mb if nt < 32 else (C_Q + mb if nt < 48 else C_H + mb)
        dur = tile * (1.08 if nt >= 48 else 1.0)
        return Task(T_G1, mb, nt, 0, 0, [(C_LN + mb, 32)], sig, dur, grp=None, name=f"g1 {mb} {nt}")
    def grp_of(nt):
        if nt < 32: return nt % 4
        if nt < 48: return nt % 4
        return (nt - 48) % 4
    order = []
    for half in range(2):
        for mb in range(4*half, 4*half+4):
            for nt in range(32):
                t = g1(mb, nt); t.grp = grp_of(nt); order.append(t)
    rest = []
    for mb in range(8):
        for nt in list(range(48, 76)) + list(range(32, 48)):
            t = g1(mb, nt); t.grp = grp_of(nt); rest.append(t)
    order += rest
    late = []
    for mb in range(8):
        for nt in range(4):
            for part in range(2):
                late.append(Task(T_G2, mb, nt, part, 0, [(C_H + mb, 28)], C_P + mb, tile * 1.72, name=f"g4 {mb} {nt} {part}"))
        for seg in range(8*mb, 8*mb+8):
            dep = (C_PROG, seg + 1) if seg <= 61 else (C_FIN, 128)
            for hg in range(8):
                late.append(Task(T_AT, seg, hg, 0, 0, [(C_Q + mb, 16), dep], C_AT + mb, P["attn"], name=f"at {seg} {hg}"))
        sp = last_split if mb == 7 else 4
        for nt in range(4):
            for kq in range(sp):
                dur = tile * 1.03 if sp == 4 else P["g5small"]
                late.append(Task(T_G2, mb, nt, 2 + kq, sp, [(C_AT + mb, 64)], C_P + mb, dur, name=f"g5 {mb} {nt} {kq}"))
        ntarget = 8 + 4 * sp
        fine = (mb == 7)
        for tb in range(8*mb, 8*mb+8):
            for q in range(16 if fine else 4):
                late.append(Task(T_FIN, tb, q, nparts[mb], 1 if fine else 0, [(C_P + mb, ntarget)], None, P["finf"] if fine else P["fin"], name=f"fin {tb} {q}"))
    pool = [i for i in range(256) if i % 8 >= 4]
    chain = [i for i in range(256) if i % 8 < 4]
    chain_end = t0 + step * 63.6
    free = {i: P["ln"] for i in pool}
    free.update({i: chain_end + 0.5 for i in chain})
    cnt_times = {}
    for mb in range(8): cnt_times[C_LN + mb] = [P["ln"]] * 32
    def ready(t):
        r = 0
        for c, tgt in t.deps:
            if c == C_PROG: r = max(r, t0 + step * (tgt + 1.4))
            elif c == C_FIN: r = max(r, chain_end + 0.5)
            else:
                l = cnt_times.get(c, [])
                if len(l) < tgt: return None
                r = max(r, sorted(l)[tgt-1])
        return r
    D = chain_end + 15
    def lst(t):
        f = P["fin"]
        if t.typ == T_G1:
            if t.b < 32: return t0 + step * (8 * t.a - 2) - tile - P.get("kvmargin", 30)
            if t.b >= 48: return D - f - tile * 1.72 - tile * 1.08 - 8 + 0.01 * t.a
            return min(D - f - tile * 2 - 3, t0 + step * 8 * (t.a + 1) + P.get("qlag", 40)) + 0.01 * t.a
        if t.typ == T_G2: return D - f - t.dur + (0.01 * t.a)
        if t.typ == T_AT: return D - f - tile - 30 + 0.001 * t.a
        return D - f
    lists = {i: [] for i in range(256)}
    pending = order + late
    seq = 0
    while pending:
        cu = min(free, key=lambda i: free[i])
        now = free[cu]
        g = (cu % 8) % 4
        best = None; bestkey = None
        for k, t in enumerate(pending):
            r = ready(t)
            if r is None: continue
            if t.grp is not None and t.grp != g and cu % 8 >= 4:
                if any(u.grp == g for u in pending): continue
            if r <= now + 0.3:
                key = (0, lst(t), k)
            else:
                key = (1, r, k)
            if bestkey is None or key < bestkey: best, bestkey = k, key
        if best is None:
            free[cu] = now + 1.0
            continue
        t = pending.pop(best)
        start = max(now, ready(t))
        end = start + t.dur
        t.start, t.end = start, end
        lists[cu].append(t)
        free[cu] = end
        if t.sig is not None: cnt_times.setdefault(t.sig, []).append(end)
    return lists, max(t.end for l in lists.values() for t in l)

def encode(t):
    w0 = t.typ | (t.a << 4) | (t.b << 12) | (t.c << 20) | (t.d << 26)
    deps = list(t.deps) + [(C_LN, 0)] * (2 - len(t.deps))
    w1 = deps[0][0] | (deps[0][1] << 8) | (deps[1][0] << 16) | (deps[1][1] << 24)
    w2 = 255 if t.sig is None else t.sig
    return [w0, w1, w2, 0]

DEFAULT = dict(tile=24.0, chain_start=27.0, step=2.5, ln=4.0, attn=2.5, g5small=9.0, fin=3.0, finf=2.5)

if __name__ == "__main__":
    lists, end = build(DEFAULT)
    print("makespan", end)
    for cu in (4, 5, 12, 100, 255, 0, 1):
        print(cu, [(t.name, round(t.start), round(t.end)) for t in lists[cu]])
    print(max(len(l) for l in lists.values()))
```

```python
import sys
from common import *
import parts
from parts import *
import parts2, chain2, sched
from sched import *

D_ZERO = 40
sTP = 64
sTW = 68
sTMO = 72
WSRD = f"s[{SRD_WS}:{SRD_WS+3}]"
OPT = set()

def cnt_off(idx): return WS_CNT + idx * 256

def poll_counter(A, s_idx, s_tgt, lexit, vt, tmo, sleep=4):
    l = A.label("pc"); ok = A.label("pcok")
    A(f"s_lshl_b32 s74, s{s_idx}, 8")
    A(f"s_add_u32 s74, s74, {WS_CNT}")
    A(f"v_mov_b32 v{vt}, 0")
    A(f"{l}:")
    A(f"buffer_load_dword v{vt+1}, v{vt}, {WSRD}, s74 offen sc1")
    A("s_waitcnt vmcnt(0)")
    A(f"v_readfirstlane_b32 s75, v{vt+1}")
    A(f"s_cmp_ge_u32 s75, s{s_tgt}")
    A(f"s_cbranch_scc1 {ok}")
    A(f"s_sleep {sleep}")
    A(f"s_sub_u32 s{tmo}, s{tmo}, 1")
    A(f"s_cmp_lg_u32 s{tmo}, 0")
    A(f"s_cbranch_scc1 {l}")
    A(f"s_branch {lexit}")
    A(f"{ok}:")

def signal(A, s_idx, vt):
    A(f"s_lshl_b32 s74, s{s_idx}, 8")
    A(f"s_add_u32 s74, s74, {WS_CNT}")
    A(f"v_mov_b32 v{vt}, 0")
    A(f"v_mov_b32 v{vt+1}, 1")
    A("s_mov_b64 exec, 1")
    A(f"buffer_atomic_add v{vt+1}, v{vt}, {WSRD}, s74 offen sc1")
    A("s_mov_b64 exec, -1")

def tstamp(A, slot):
    if "tlog" in OPT:
        A("s_memrealtime s[76:77]"); A("s_waitcnt lgkmcnt(0)")
        A(f"s_mov_b32 m0, s{slot}"); A("s_nop 0")
        A("v_writelane_b32 v255, s76, m0")
        A(f"s_add_u32 s{slot}, s{slot}, 1")

def build(P):
    lists, end = sched.build(P)
    maxlen = max(len(l) for l in lists.values()) + 1
    A = Asm()
    A(f"; @launch grid=(256,1,1) block=(256,1,1) lds=163840")
    A('.amdgcn_target "amdgcn-amd-amdhsa--gfx950"')
    kn = NAME + "_kernel"
    kernel_header(A, kn)
    A("s_cmp_ge_u32 s2, 256"); A("s_cbranch_scc1 L_end")
    prologue(A)
    dbg = f"s[{P_DBG}:{P_DBG+1}]"
    A(f"s_mov_b32 s{sTMO}, 1000000")
    if "tlog" in OPT:
        A("s_mov_b32 s73, 0"); A("v_mov_b32 v255, 0")
        tstamp(A, 73)
    lz = A.label("nz")
    A(f"s_lshl_b32 s48, s2, 2"); A(f"s_add_u32 s48, s48, s{S_W}")
    A("s_cmp_lg_u32 s48, 1023"); A(f"s_cbranch_scc1 {lz}")
    for r in range(4): A(f"v_mov_b32 v{16+r}, 0")
    for k in range(4):
        A(f"s_mov_b32 s48, {WS_CNT + k*4096}")
        for i in range(4):
            A(f"buffer_store_dwordx4 v[16:19], v{V_L16}, {WSRD}, s48 offen offset:{i*1024} sc1")
    A("s_waitcnt vmcnt(0)")
    A("v_mov_b32 v17, 1")
    A(f"global_store_dword v16, v17, {dbg} offset:{D_ZERO} sc1")
    A(f"{lz}:")
    A("s_mov_b32 s48, s2")
    ln_task(A, "sc1")
    A("s_waitcnt vmcnt(0)")
    A("s_barrier")
    l0 = A.label("lns")
    A(f"s_cmp_lg_u32 s{S_W}, 0"); A(f"s_cbranch_scc1 {l0}")
    lw = A.label("zw")
    A("v_mov_b32 v16, 0")
    A(f"{lw}:")
    A(f"global_load_dword v17, v16, {dbg} offset:{D_ZERO} sc1")
    A("s_waitcnt vmcnt(0)")
    A("v_readfirstlane_b32 s48, v17")
    lzok = A.label("zok")
    A("s_cmp_lg_u32 s48, 0"); A(f"s_cbranch_scc1 {lzok}")
    A(f"s_sub_u32 s{sTMO}, s{sTMO}, 1"); A(f"s_cmp_lg_u32 s{sTMO}, 0"); A(f"s_cbranch_scc1 {lw}")
    A("s_branch L_fail")
    A(f"{lzok}:")
    A("s_lshr_b32 s48, s2, 5")
    signal(A, 48, 16)
    A(f"{l0}:")
    A("s_barrier")
    tstamp(A, 73)
    A("s_and_b32 s60, s2, 7")
    A("s_lshr_b32 s61, s2, 3")
    A("s_cmp_ge_u32 s60, 4"); A("s_cbranch_scc1 L_pool")
    c = chain2
    def wait_kv0(B, lexit):
        B(f"s_mov_b32 s52, {C_KV}"); B("s_mov_b32 s53, 32")
        sv = (c.sT0, c.sT1)
        poll_counter(B, 52, 53, lexit, c.T, c.sTO, 2)
    def pre_kv(B, lexit):
        sk = B.label("kvok")
        B(f"s_add_u32 s52, s{c.sS}, 2")
        B("s_and_b32 s53, s52, 7")
        B("s_cmp_lg_u32 s53, 0"); B(f"s_cbranch_scc1 {sk}")
        B("s_cmp_ge_u32 s52, 64"); B(f"s_cbranch_scc1 {sk}")
        B("s_lshr_b32 s52, s52, 3"); B(f"s_add_u32 s52, s52, {C_KV}"); B("s_mov_b32 s53, 32")
        poll_counter(B, 52, 53, lexit, c.T+8, c.sTO, 2)
        B(f"{sk}:")
    def progress(B):
        sk = B.label("npg")
        B("s_cmp_lg_u32 s2, 0"); B(f"s_cbranch_scc1 {sk}")
        B(f"s_cmp_lt_u32 s{c.sS}, 2"); B(f"s_cbranch_scc1 {sk}")
        B(f"s_sub_u32 s{c.sT0}, s{c.sS}, 1")
        B(f"v_mov_b32 v{c.T+8}, 0"); B(f"v_mov_b32 v{c.T+9}, s{c.sT0}")
        B(f"s_mov_b32 s{c.sT0}, {cnt_off(C_PROG)}")
        B("s_mov_b64 exec, 1")
        B(f"buffer_store_dword v{c.T+9}, v{c.T+8}, {WSRD}, s{c.sT0} offen sc1")
        B("s_mov_b64 exec, -1")
        B(f"{sk}:")
    def fin(B):
        sk = B.label("nf")
        B(f"s_cmp_lg_u32 s{S_W}, 3"); B(f"s_cbranch_scc1 {sk}")
        B(f"s_mov_b32 s52, {C_FIN}")
        signal(B, 52, c.T)
        B(f"{sk}:")
    if "tlog" in OPT: A("s_mov_b32 s32, s73")
    c.chain_role(A, dict(wait_kv0=wait_kv0, pre_kv=pre_kv, progress2=progress, fin=fin))
    A("v_mbcnt_lo_u32_b32 v0, -1, 0")
    A("v_mbcnt_hi_u32_b32 v0, -1, v0")
    A(f"s_lshl_b32 s48, s{S_W}, 6")
    A("v_add_u32 v0, s48, v0")
    A(f"s_mov_b32 s{sTMO}, 1000000")
    if "tlog" in OPT:
        A("s_mov_b32 s73, s32")
        tstamp(A, 73)
    A("L_pool:")
    A(f"s_getpc_b64 s[{sTP}:{sTP+1}]")
    A("L_pc:")
    A(f"s_add_u32 s{sTP}, s{sTP}, L_table-L_pc")
    A(f"s_addc_u32 s{sTP+1}, s{sTP+1}, 0")
    A(f"s_mul_i32 s48, s2, {maxlen*16}")
    A(f"s_add_u32 s{sTP}, s{sTP}, s48")
    A(f"s_addc_u32 s{sTP+1}, s{sTP+1}, 0")
    A("L_next:")
    A(f"s_load_dwordx4 s[{sTW}:{sTW+3}], s[{sTP}:{sTP+1}], 0")
    A(f"s_add_u32 s{sTP}, s{sTP}, 16")
    A(f"s_addc_u32 s{sTP+1}, s{sTP+1}, 0")
    A("s_waitcnt lgkmcnt(0)")
    A(f"s_and_b32 s66, s{sTW}, 15")
    A("s_cmp_eq_u32 s66, 0"); A("s_cbranch_scc1 L_done")
    lnw = A.label("nw")
    A(f"s_cmp_lg_u32 s{S_W}, 0"); A(f"s_cbranch_scc1 {lnw}")
    A(f"s_and_b32 s48, s{sTW+1}, 255"); A(f"s_bfe_u32 s49, s{sTW+1}, 0x80008")
    poll_counter(A, 48, 49, "L_fail", 16, sTMO)
    A(f"s_bfe_u32 s48, s{sTW+1}, 0x80010"); A(f"s_lshr_b32 s49, s{sTW+1}, 24")
    l2 = A.label("nd2")
    A("s_cmp_eq_u32 s49, 0"); A(f"s_cbranch_scc1 {l2}")
    poll_counter(A, 48, 49, "L_fail", 16, sTMO)
    A(f"{l2}:")
    A(f"{lnw}:")
    A("s_barrier")
    tstamp(A, 73)
    A(f"s_bfe_u32 s60, s{sTW}, 0x80004")
    A(f"s_bfe_u32 s61, s{sTW}, 0x8000c")
    A(f"s_bfe_u32 s62, s{sTW}, 0x60014")
    A(f"s_lshr_b32 s63, s{sTW}, 26")
    A(f"s_cmp_eq_u32 s66, {T_G2}"); A("s_cbranch_scc1 L_g2")
    A(f"s_cmp_eq_u32 s66, {T_AT}"); A("s_cbranch_scc1 L_at")
    A(f"s_cmp_eq_u32 s66, {T_FIN}"); A("s_cbranch_scc1 L_fin")
    parts2.g1_task(A, "g1", "sc1", "sc1")
    A("s_branch L_sig")
    A("L_g2:")
    parts2.g2_task(A, "g2", "sc1", "sc1")
    A("s_branch L_sig")
    A("L_at:")
    parts2.attn_task(A, "sc1", "sc1")
    A("s_branch L_sig")
    A("L_fin:")
    A("s_cmp_eq_u32 s63, 1"); A("s_cbranch_scc1 L_finf")
    parts2.fin_task(A, 6, "sc1")
    tstamp(A, 73)
    A("s_branch L_next")
    A("L_finf:")
    parts2.fin_fine(A, 2 + P.get("last_split", 16), "sc1")
    tstamp(A, 73)
    A("s_branch L_next")
    A("L_sig:")
    A("s_waitcnt vmcnt(0)")
    A("s_barrier")
    tstamp(A, 73)
    A(f"s_cmp_lg_u32 s{S_W}, 0"); A("s_cbranch_scc1 L_next")
    signal(A, sTW+2, 16)
    A("s_branch L_next")
    A("L_fail:")
    A("v_mov_b32 v16, 0"); A("v_mov_b32 v17, s2"); A("v_add_u32 v17, 0x1000, v17")
    A(f"global_store_dword v16, v17, {dbg} offset:44")
    A("L_done:")
    if "tlog" in OPT:
        A(f"s_cmp_lg_u32 s{S_W}, 0"); A("s_cbranch_scc1 L_end")
        A(f"s_lshl_b32 s78, s2, 8"); A(f"s_add_u32 s78, s78, {parts.WS_STAMP + 0x40000}")
        A(f"v_lshrrev_b32 v2, 2, v{V_L16}")
        A(f"buffer_store_dword v255, v2, {WSRD}, s78 offen")
    A("L_end:")
    A("s_endpgm")
    A(".p2align 6")
    A(".type L_table,@object")
    A("L_table:")
    for cu in range(256):
        ws = []
        for t in lists[cu]: ws += encode(t)
        ws += [0] * (maxlen*4 - len(ws))
        for i in range(0, len(ws), 16):
            A(".long " + ", ".join(f"{x:#x}" for x in ws[i:i+16]))
    kernel_desc(A, kn)
    return A.text(), lists, end

if __name__ == "__main__":
    P = dict(sched.DEFAULT)
    for a in sys.argv[2:]:
        OPT.add(a); chain2.OPT.add(a)
        if "=" in a:
            k, v = a.split("=")
            if k in P or k in ("last_split", "kvmargin", "qlag"): P[k] = float(v) if k != "last_split" else int(v)
    parts2.use16(True)
    txt, lists, end = build(P)
    hdr = "".join(open("cdna_kernels/" + NAME + ".s.ref").readlines()[:15])
    open(sys.argv[1], "w").write(hdr + txt)
    import pickle
    pickle.dump({cu: [(t.name, t.start, t.end) for t in l] for cu, l in lists.items()}, open(sys.argv[1] + ".pkl", "wb"))
    print("sim makespan", end, "bytes", len(txt))
```
